```python
import torch

def _softmax(x, axis=-1):
    return torch.softmax(x, dim=axis)
def _gelu(x):
    return torch.nn.functional.gelu(x, approximate="tanh")
def _silu(x):
    return torch.nn.functional.silu(x)
def _sigmoid(x):
    return torch.sigmoid(x)
def _layernorm(x, axis=-1, eps=1e-5):
    m = x.mean(dim=axis, keepdim=True)
    v = x.var(dim=axis, keepdim=True, unbiased=False)
    return (x - m) / torch.sqrt(v + eps)
def _scatter_add(tgt, idx, src, axis=0):
    return tgt.clone().index_add_(axis, idx, src)
def _segment_sum(src, seg, n):
    out = torch.zeros((n,) + src.shape[1:], dtype=src.dtype)
    return out.index_add_(0, seg, src)
def _pad(x, pw):
    flat = tuple(v for pair in reversed(pw) for v in pair)
    return torch.nn.functional.pad(x, flat)

kernel_name = 'standalone__dense_activation_squared_relu__sampling'

def setup_inputs():

    _w = (lambda a: (lambda t: t.to(torch.bfloat16) if t.is_floating_point() else t)(torch.as_tensor(a)))
    B, S, D, F = 32, 16, 576, 4608
    return {
        "x": _w((lambda *s: torch.randn(*s, dtype=torch.bfloat16) * 0.05)(B, S, D)),
        "w1": _w((lambda *s: torch.randn(*s, dtype=torch.bfloat16) * 0.05)(D, F)),
        "b1": _w((lambda *s: torch.randn(*s, dtype=torch.bfloat16) * 0.05)(F)),
        "w2": _w((lambda *s: torch.randn(*s, dtype=torch.bfloat16) * 0.05)(F, D)),
        "b2": _w((lambda *s: torch.randn(*s, dtype=torch.bfloat16) * 0.05)(D)),
    }

def reference(x, w1, b1, w2, b2):
    h = torch.einsum("bsd,df->bsf", x, w1) + b1
    zero = torch.zeros_like(h)
    r = torch.where(h > zero, h, zero)
    h = r * r
    out = torch.einsum("bsf,fd->bsd", h, w2) + b2
    return out
```

```python
import sys, os
NAME = "standalone__dense_activation_squared_relu__sampling_kernel"

def build(diag=False, rot=(3,1), pre_w2=2, la=10):
    L = []
    def A(s): L.append("    " + s)
    def LB(s): L.append(s + ":")
    vm = []
    lg = []
    def VM(label, text):
        if len(vm) >= 60:
            n = 50
            A(f"s_waitcnt vmcnt({n})"); del vm[:len(vm)-n]
        A(text); vm.append(label)
    def DS(label, text):
        if len(lg) >= 15:
            n = 14
            A(f"s_waitcnt lgkmcnt({n})"); del lg[:len(lg)-n]
        A(text); lg.append(label)
    def WVM(label):
        idx = [i for i, x in enumerate(vm) if x == label]
        if not idx: return
        n = len(vm) - 1 - idx[-1]
        A(f"s_waitcnt vmcnt({n})"); del vm[:idx[-1]+1]
    def WLG(label):
        idx = [i for i, x in enumerate(lg) if x == label]
        if not idx: return
        n = len(lg) - 1 - idx[-1]
        A(f"s_waitcnt lgkmcnt({n})"); del lg[:idx[-1]+1]
    def SPIN(lab):
        A("s_add_u32 s69, s69, 1")
        A("s_cmp_gt_u32 s69, 0x40000")
        A(f"s_cbranch_scc1 {lab}")
    nst = [0]
    def STAMP():
        if diag:
            i = nst[0]; nst[0] += 1
            A(f"s_memtime s[{70+2*i}:{71+2*i}]")
    HB = 0x100000
    PB = 0x700000
    SLOT = 28672
    W2ST = 114688
    sS, sQ, sP, sR, sW = "s5", "s6", "s7", "s8", "s9"
    SRD_X, SRD_W1, SRD_W2, SRD_WS, SRD_OUT, SRD_B1, SRD_B2, SRD_DBG = ("s[32:35]","s[36:39]","s[40:43]","s[44:47]","s[48:51]","s[52:55]","s[56:59]","s[60:63]")
    sXB, sXB2, sW1B, sT, sLW, sTMP, sTMP2, sW2B, sHB, sD, sNON = "s10","s11","s12","s13","s14","s15","s64","s65","s66","s67","s68"
    vL, vXD, vW1D, vW2D = "v2", "v3", "v4", "v5"
    vXA = [["v6","v7"],["v8","v9"]]
    vWA = [["v10","v11"],["v12","v13"]]
    vW2A = ["v14","v15","v16","v17"]
    vL16 = "v18"
    vBAD = "v19"
    HM = 20
    PM = 24
    B1 = 28
    B2 = 36
    TMP = 40
    def HF(d, mt): return 76 + (d*5+mt)*4
    ACC1 = 200
    def A1(mt, jj): return ACC1 + (mt*2+jj)*4
    def XF(buf, mt): return 120 + buf*20 + mt*4
    def WF(buf, jj): return 160 + buf*8 + jj*4
    def W2F(d, jj): return (d*4+jj)*4
    def A2(mt, jj): return 144 + (mt*4+jj)*4
    def v4(b): return f"v[{b}:{b+3}]"
    def a4(b): return f"a[{b}:{b+3}]"

    A("s_cmp_ge_u32 s2, 256")
    A("s_cbranch_scc1 L_end")
    A("s_load_dwordx16 s[16:31], s[0:1], 0")
    A("s_memrealtime s[64:65]")
    STAMP()
    A("s_and_b32 s3, s2, 7")
    A("s_lshr_b32 s4, s2, 3")
    A(f"s_lshr_b32 {sS}, s3, 1")
    A("s_and_b32 s3, s3, 1")
    A("s_lshl_b32 s3, s3, 5")
    A(f"s_add_u32 {sQ}, s3, s4")
    A(f"s_cmp_ge_u32 {sQ}, 63")
    A("s_cbranch_scc1 L_end_wait")
    A(f"s_mul_i32 {sP}, {sQ}, 57")
    A(f"s_lshr_b32 {sP}, {sP}, 9")
    A(f"s_mul_i32 s3, {sP}, 9")
    A(f"s_sub_u32 {sR}, {sQ}, s3")
    A("v_lshrrev_b32 v1, 6, v0")
    A(f"v_and_b32 {vL}, 63, v0")
    A(f"v_readfirstlane_b32 {sW}, v1")
    T = TMP
    A(f"v_lshrrev_b32 v{T}, 3, {vL}")
    A(f"v_lshrrev_b32 v{T+1}, 4, {vL}")
    A(f"v_and_b32 v{T+2}, 7, {vL}")
    A(f"v_and_b32 v{T+3}, 1, v1")
    A(f"v_lshl_add_u32 v{T+3}, v{T+3}, 2, v{T+1}")
    A(f"v_xor_b32 v{T+4}, v{T+2}, v{T+3}")
    A(f"v_mul_u32_u24 v{T+5}, 1152, v{T}")
    A(f"v_lshl_add_u32 {vXD}, v{T+4}, 4, v{T+5}")
    A(f"v_bfe_u32 v{T+4}, {vL}, 1, 3")
    A(f"v_xor_b32 v{T+4}, v{T+4}, v{T+3}")
    A(f"v_and_b32 v{T+6}, 1, {vL}")
    A(f"v_lshl_add_u32 v{T+4}, v{T+4}, 1, v{T+6}")
    A(f"v_mul_u32_u24 v{T+7}, 9216, v{T+1}")
    A(f"v_lshl_add_u32 {vW1D}, v{T+4}, 4, v{T+7}")
    A(f"v_bfe_u32 v{T+4}, {vL}, 1, 2")
    A(f"v_xor_b32 v{T+4}, v{T+4}, v{T+1}")
    A(f"v_lshl_add_u32 v{T+4}, v{T+4}, 1, v{T+6}")
    A(f"v_lshl_add_u32 {vW2D}, v{T+4}, 4, v{T+5}")
    A(f"v_lshlrev_b32 {vL16}, 4, {vL}")
    A(f"s_mul_i32 {sXB}, {sP}, 72")
    A(f"s_lshl_b32 s3, {sW}, 3")
    A(f"s_add_u32 {sXB}, {sXB}, s3")
    A(f"s_mul_i32 {sXB}, {sXB}, 1152")
    A(f"s_cmp_ge_u32 {sW}, 2")
    A(f"s_cselect_b32 {sXB2}, 0x40000000, 73728")
    A(f"s_mul_i32 s4, {sS}, 9")
    A(f"s_add_u32 s4, s4, {sR}")
    A(f"s_lshl_b32 s4, s4, 8")
    A(f"s_mul_i32 {sW1B}, {sW}, {8*9216}")
    A(f"s_add_u32 {sW1B}, {sW1B}, s4")
    A(f"s_lshl_b32 {sLW}, {sW}, 10")
    A(f"s_mul_i32 {sT}, {sP}, {rot[0]}")
    A(f"s_mul_i32 s3, {sR}, {rot[1]}")
    A(f"s_add_u32 {sT}, {sT}, s3")
    A(f"s_mul_i32 s3, {sT}, 7282")
    A(f"s_lshr_b32 s3, s3, 16")
    A(f"s_mul_i32 s3, s3, 9")
    A(f"s_sub_u32 {sT}, {sT}, s3")
    A("s_waitcnt lgkmcnt(0)")
    A(f"s_mul_i32 {sNON}, s64, 0x9E3779B1")
    A(f"s_lshr_b32 s3, {sNON}, 15")
    A(f"s_xor_b32 {sNON}, {sNON}, s3")
    A(f"s_mul_i32 {sNON}, {sNON}, 0x85EBCA6B")
    A(f"s_lshr_b32 s3, {sNON}, 13")
    A(f"s_xor_b32 {sNON}, {sNON}, s3")
    A(f"s_or_b32 {sNON}, {sNON}, 1")
    A(f"s_and_b32 {sNON}, {sNON}, 0xFFFFFEFF")
    def SRD(base, lo, nbytes):
        A(f"s_mov_b32 s{base}, s{lo}"); A(f"s_mov_b32 s{base+1}, s{lo+1}")
        A(f"s_mov_b32 s{base+2}, {nbytes}"); A(f"s_mov_b32 s{base+3}, 0x20000")
    SRD(32, 16, 589824)
    SRD(36, 18, 5308416)

    def issue_stage_items(pos):
        slot = (pos % 4) * SLOT
        items = []
        def first():
            A(f"s_lshl_b32 {sTMP}, {sT}, 7")
            A(f"s_add_u32 {sTMP}, {sTMP}, {sXB}")
            A(f"s_mul_i32 {sTMP2}, {sT}, {64*9216}")
            A(f"s_add_u32 {sTMP2}, {sTMP2}, {sW1B}")
            A(f"s_add_u32 {sT}, {sT}, 1")
            A(f"s_cmp_eq_u32 {sT}, 9")
            A(f"s_cselect_b32 {sT}, 0, {sT}")
        def xp(i):
            def f():
                if i == 0: first()
                A(f"s_add_u32 m0, {sLW}, {slot + i*4096}")
                if i == 0:
                    A("s_nop 0")
                    VM(f"st{pos}", f"buffer_load_dwordx4 {vXD}, {SRD_X}, {sTMP} offen lds")
                else:
                    if i == 1: A(f"s_add_u32 s3, {sTMP}, 36864")
                    else: A(f"s_add_u32 s3, {sTMP}, {sXB2}")
                    VM(f"st{pos}", f"buffer_load_dwordx4 {vXD}, {SRD_X}, s3 offen lds")
            return f
        def wp(gk, e):
            def f():
                A(f"s_add_u32 m0, {sLW}, {slot + 12288 + gk*8192 + e*4096}")
                A(f"s_add_u32 s3, {sTMP2}, {(32*gk+4*e)*9216}")
                VM(f"st{pos}", f"buffer_load_dwordx4 {vW1D}, {SRD_W1}, s3 offen lds")
            return f
        items = [xp(0), wp(0,0), wp(0,1), xp(1), wp(1,0), wp(1,1), xp(2)]
        return items
    for f in issue_stage_items(0): f()
    SRD(40, 22, 5308416)
    SRD(44, 30, 0x10000000)
    SRD(48, 26, 589824)
    SRD(52, 20, 9216)
    SRD(56, 24, 1152)
    SRD(60, 28, 256)
    A(f"v_mov_b32 v{T+8}, {sNON}")
    A(f"s_or_b32 s3, {sS}, {sR}")
    A(f"s_or_b32 s3, s3, {sW}")
    A(f"s_lshl_b32 s16, {sP}, 5")
    A(f"s_cmp_lg_u32 s3, 0")
    A(f"s_cselect_b32 s3, 0x1000, s16")
    A("s_mov_b64 s[16:17], exec")
    A("s_mov_b64 exec, 1")
    VM("nst", f"buffer_store_dword v{T+8}, off, {SRD_DBG}, s3 sc1")
    A("s_mov_b64 exec, s[16:17]")
    A("s_mov_b32 s69, 0")
    A(f"v_lshlrev_b32 v{T+8}, 3, v{T+1}")
    A(f"s_lshl_b32 s3, {sW}, 6")
    A(f"s_add_u32 s3, s3, s4")
    VM("bias", f"buffer_load_dwordx2 v[{T+10}:{T+11}], v{T+8}, {SRD_B1}, s3 offen")
    VM("bias", f"buffer_load_dwordx2 v[{T+12}:{T+13}], v{T+8}, {SRD_B1}, s3 offen offset:32")
    A(f"s_lshl_b32 s3, {sR}, 7")
    A(f"s_lshl_b32 s4, {sW}, 5")
    A(f"s_add_u32 s3, s3, s4")
    VM("bias", f"buffer_load_dwordx2 v[{T+14}:{T+15}], v{T+8}, {SRD_B2}, s3 offen")
    for f in issue_stage_items(1): f()
    A(f"v_and_b32 v{T+4}, 15, {vL}")
    A(f"v_lshrrev_b32 v{T+5}, 1, v{T+4}")
    A(f"v_xor_b32 v{T+5}, v{T+5}, v{T+1}")
    A(f"v_lshlrev_b32 v{T+4}, 7, v{T+4}")
    A(f"v_lshl_add_u32 {vXA[0][0]}, v{T+5}, 4, v{T+4}")
    A(f"v_xor_b32 {vXA[0][1]}, 64, {vXA[0][0]}")
    A(f"v_add_u32 {vXA[1][0]}, {2*SLOT}, {vXA[0][0]}")
    A(f"v_add_u32 {vXA[1][1]}, {2*SLOT}, {vXA[0][1]}")
    A(f"v_lshrrev_b32 v{T+4}, 2, {vL}")
    A(f"v_and_b32 v{T+5}, 7, v{T+4}")
    A(f"v_lshlrev_b32 v{T+6}, 1, v1")
    A(f"v_xor_b32 v{T+5}, v{T+5}, v{T+6}")
    A(f"v_and_b32 v{T+6}, 3, {vL}")
    A(f"v_lshlrev_b32 v{T+6}, 3, v{T+6}")
    A(f"v_lshl_add_u32 v{T+7}, v{T+4}, 8, v{T+6}")
    A(f"v_lshl_add_u32 {vWA[0][0]}, v{T+5}, 5, v{T+7}")
    A(f"v_xor_b32 {vWA[0][1]}, 32, {vWA[0][0]}")
    A(f"v_add_u32 {vWA[1][0]}, {2*SLOT}, {vWA[0][0]}")
    A(f"v_add_u32 {vWA[1][1]}, {2*SLOT}, {vWA[0][1]}")
    A(f"v_bfe_u32 v{T+5}, v{T+4}, 1, 2")
    A(f"v_xor_b32 v{T+5}, v{T+5}, v1")
    A(f"v_lshl_add_u32 v{T+7}, v{T+4}, 7, v{T+6}")
    A(f"v_lshl_add_u32 v{T+7}, v{T+5}, 5, v{T+7}")
    A(f"v_mul_u32_u24 v{T+5}, 12288, v1")
    A(f"v_add_u32 {vW2A[0]}, v{T+7}, v{T+5}")
    for jj in (1,2,3):
        A(f"v_xor_b32 {vW2A[jj]}, {jj*32}, {vW2A[0]}")
    A(f"s_mul_i32 {sW2B}, {sS}, 1152")
    A(f"s_lshl_b32 s3, {sW}, 5")
    A(f"s_add_u32 {sW2B}, {sW2B}, s3")
    A(f"s_mul_i32 {sW2B}, {sW2B}, 1152")
    A(f"s_lshl_b32 s3, {sR}, 7")
    A(f"s_add_u32 {sW2B}, {sW2B}, s3")
    A(f"s_mul_i32 {sHB}, {sS}, 63")
    A(f"s_mul_i32 s3, {sP}, 9")
    A(f"s_add_u32 {sHB}, {sHB}, s3")
    A(f"s_mul_i32 {sHB}, {sHB}, 20480")
    A(f"s_mul_i32 s3, {sW}, 5120")
    A(f"s_add_u32 {sHB}, {sHB}, s3")
    A(f"s_add_u32 {sHB}, {sHB}, {HB}")

    def w2reg(d): return (W2ST if d < 3 or d >= 6 else SLOT) + (d % 3) * 4096
    def rank_sgpr(dst, d):
        A(f"s_add_u32 {dst}, {sR}, {d}")
        A(f"s_cmp_ge_u32 {dst}, 9")
        A(f"s_cselect_b32 s3, 9, 0")
        A(f"s_sub_u32 {dst}, {dst}, s3")
    def w2_items(d):
        items = []
        def mk(e):
            def f():
                if e == 0:
                    rank_sgpr(sD, d)
                    A(f"s_mul_i32 {sD}, {sD}, {128*1152}")
                    A(f"s_add_u32 {sD}, {sD}, {sW2B}")
                    A(f"s_mul_i32 s4, {sW}, 12288")
                A(f"s_add_u32 m0, s4, {w2reg(d) + e*1024}")
                A(f"s_add_u32 s3, {sD}, {8*e*1152}")
                VM(f"w2_{d}", f"buffer_load_dwordx4 {vW2D}, {SRD_W2}, s3 offen lds")
            return f
        return [mk(e) for e in range(4)]
    def w2_read(d):
        WVM(f"w2_{d}")
        base = w2reg(d)
        for jj in range(4):
            for hf in range(2):
                off = base + hf*2048
                b = W2F(d, jj) + hf*2
                if off <= 65535 - 0:
                    DS(f"w2r{d}", f"ds_read_b64_tr_b16 a[{b}:{b+1}], {vW2A[jj]} offset:{off}")
                else:
                    DS(f"w2r{d}", f"ds_read_b64_tr_b16 a[{b}:{b+1}], v{TMP+20+jj} offset:{off-W2ST}")
    for jj in range(4):
        A(f"v_add_u32 v{TMP+20+jj}, {W2ST}, {vW2A[jj]}")

    WVM("bias")
    for k in range(2):
        for h in range(2):
            src = T+10+2*k+h
            A(f"v_lshlrev_b32 v{B1+4*k+2*h}, 16, v{src}")
            A(f"v_and_b32 v{B1+4*k+2*h+1}, 0xffff0000, v{src}")
    for h in range(2):
        A(f"v_lshlrev_b32 v{B2+2*h}, 16, v{T+14+h}")
        A(f"v_and_b32 v{B2+2*h+1}, 0xffff0000, v{T+14+h}")

    def p1_reads(pos, ks):
        slot = pos % 4
        win = slot // 2
        so = (slot % 2) * SLOT
        buf = ks
        lab = f"r{pos}_{ks}"
        for jj in range(2):
            for hf in range(2):
                b = WF(buf, jj) + 2*hf
                DS(lab, f"ds_read_b64_tr_b16 v[{b}:{b+1}], {vWA[win][jj]} offset:{so + 12288 + ks*8192 + hf*4096}")
        for mt in range(5):
            DS(lab, f"ds_read_b128 {v4(XF(buf,mt))}, {vXA[win][ks]} offset:{so + mt*2048}")
    def p1_mfma(pos, ks, fillers):
        buf = ks
        WLG(f"r{pos}_{ks}")
        n = 0
        for mt in range(5):
            for jj in range(2):
                c = v4(B1+4*jj) if (pos == 0 and ks == 0) else v4(A1(mt,jj))
                A(f"v_mfma_f32_16x16x32_bf16 {v4(A1(mt,jj))}, {v4(WF(buf,jj))}, {v4(XF(buf,mt))}, {c}")
                n += 1
                if fillers and n % 3 == 1:
                    fillers.pop(0)()
    pend = []
    for pos in range(9):
        WVM(f"st{pos}")
        A("s_barrier")
        if pos in (0, 4, 8): STAMP()
        if pos + 2 <= 8:
            pend += issue_stage_items(pos+2)
        elif pos == 7:
            for d in range(pre_w2): pend += w2_items(d)
        p1_reads(pos, 0)
        if pos > 0:
            p1_mfma(pos-1, 1, pend)
        p1_reads(pos, 1)
        p1_mfma(pos, 0, pend)
        if pos < 7:
            while pend: pend.pop(0)()
        if pos == 3:
            A(f"s_lshl_b32 s3, {sP}, 5")
            VM("nonce", f"buffer_load_dword v{T+30}, off, {SRD_DBG}, s3 sc1")
        if pos == 6:
            WVM("nonce")
            LB("L_nonce")
            A(f"v_readfirstlane_b32 {sNON}, v{T+30}")
            A(f"s_cmp_lg_u32 {sNON}, 0")
            A("s_cbranch_scc1 L_nonce_ok")
            SPIN("L_nonce_ok")
            A(f"s_lshl_b32 s3, {sP}, 5")
            A(f"buffer_load_dword v{T+30}, off, {SRD_DBG}, s3 sc1")
            A("s_waitcnt vmcnt(0)")
            A("s_branch L_nonce")
            LB("L_nonce_ok")
            A(f"v_and_b32 v{T+31}, 3, {vL}")
            A(f"v_lshlrev_b32 v{T+31}, 3, v{T+31}")
            A(f"v_lshrrev_b32 v{T+31}, v{T+31}, v{T+30}")
            for k in range(4):
                A(f"v_bfe_u32 v{PM+k}, v{T+31}, {2*k}, 2")
                A(f"v_and_b32 v{T+32}, 1, v{PM+k}")
                A(f"v_lshlrev_b32 v{T+32}, 15, v{T+32}")
                A(f"v_lshrrev_b32 v{T+33}, 1, v{PM+k}")
                A(f"v_lshl_or_b32 v{HM+k}, v{T+33}, 31, v{T+32}")
    p1_mfma(8, 1, pend)
    while pend: pend.pop(0)()
    A(f"s_mul_i32 s4, {sR}, 20480")
    A(f"s_add_u32 s4, s4, {sHB}")
    A("s_nop 4")
    for mt in range(5):
        t = T
        for jj in range(2):
            a = A1(mt, jj)
            for k in range(4):
                A(f"v_max_f32 v{t+4*jj+k}, 0, v{a+k}")
            A(f"v_pk_mul_f32 v[{t+4*jj}:{t+4*jj+1}], v[{t+4*jj}:{t+4*jj+1}], v[{t+4*jj}:{t+4*jj+1}]")
            A(f"v_pk_mul_f32 v[{t+4*jj+2}:{t+4*jj+3}], v[{t+4*jj+2}:{t+4*jj+3}], v[{t+4*jj+2}:{t+4*jj+3}]")
        h = HF(0, mt)
        for k in range(4):
            A(f"v_cvt_pk_bf16_f32 v{h+k}, v{t+2*k}, v{t+2*k+1}")
        o = T + 8 + 4*(mt % 2)
        for k in range(4):
            A(f"v_or_b32 v{o+k}, v{h+k}, v{HM+k}")
        if mt < 4:
            VM("hst", f"buffer_store_dwordx4 {v4(o)}, {vL16}, {SRD_WS}, s4 offen offset:{mt*1024} sc1")
        else:
            A(f"s_add_u32 s3, s4, 4096")
            VM("hst", f"buffer_store_dwordx4 {v4(o)}, {vL16}, {SRD_WS}, s3 offen sc1")
    STAMP()
    def h_items(d):
        def mk(mt):
            def f():
                if mt == 0:
                    rank_sgpr(sTMP, d)
                    A(f"s_mul_i32 {sTMP}, {sTMP}, 20480")
                    A(f"s_add_u32 s{16+d}, {sTMP}, {sHB}")
                    A(f"s_add_u32 {sTMP2}, s{16+d}, 4096")
                if mt < 4:
                    VM(f"h{d}", f"buffer_load_dwordx4 {v4(HF(d,mt))}, {vL16}, {SRD_WS}, s{16+d} offen offset:{mt*1024} sc1")
                else:
                    VM(f"h{d}", f"buffer_load_dwordx4 {v4(HF(d,mt))}, {vL16}, {SRD_WS}, {sTMP2} offen sc1")
            return f
        return [mk(mt) for mt in range(5)]
    def h_check(d):
        WVM(f"h{d}")
        LB(f"L_hc{d}")
        for mt in range(5):
            h = HF(d, mt)
            for k in range(4):
                A(f"v_xor_b32 v{h+k}, v{h+k}, v{HM+k}")
            if mt == 0:
                A(f"v_or3_b32 {vBAD}, v{h}, v{h+1}, v{h+2}")
                A(f"v_or_b32 {vBAD}, {vBAD}, v{h+3}")
            else:
                A(f"v_or3_b32 {vBAD}, {vBAD}, v{h}, v{h+1}")
                A(f"v_or3_b32 {vBAD}, {vBAD}, v{h+2}, v{h+3}")
        A(f"v_and_b32 {vBAD}, 0x80008000, {vBAD}")
        A(f"v_cmp_ne_u32 vcc, 0, {vBAD}")
        A(f"s_cbranch_vccz L_hok{d}")
        SPIN(f"L_hok{d}")
        A(f"s_add_u32 s3, s{16+d}, 4096")
        for mt in range(4):
            A(f"buffer_load_dwordx4 {v4(HF(d,mt))}, {vL16}, {SRD_WS}, s{16+d} offen offset:{mt*1024} sc1")
        A(f"buffer_load_dwordx4 {v4(HF(d,4))}, {vL16}, {SRD_WS}, s3 offen sc1")
        A("s_waitcnt vmcnt(0)")
        A(f"s_branch L_hc{d}")
        LB(f"L_hok{d}")
    def p2_mfma(d, fillers):
        WLG(f"w2r{d}")
        n = 0
        for mt in range(5):
            for jj in range(4):
                c = "0" if d == 0 else a4(A2(mt,jj))
                A(f"v_mfma_f32_16x16x32_bf16 {a4(A2(mt,jj))}, {a4(W2F(d,jj))}, {v4(HF(d,mt))}, {c}")
                n += 1
                if fillers and n % 3 == 1:
                    fillers.pop(0)()
    loads = []
    for d in range(pre_w2, 6):
        loads += [("w", d, f) for f in w2_items(d)]
    order_tail = [("h",1),("w",6),("h",2),("w",7),("h",3),("w",8),("h",4),("h",5),("h",6),("h",7),("h",8)]
    for kind, d in order_tail:
        loads += [(kind, d, f) for f in (h_items(d) if kind == "h" else w2_items(d))]
    w2_read_done = set()
    def issue_n(n):
        k = 0
        while loads and k < n:
            kind, d, f = loads[0]
            if kind == "w" and d >= 6 and (d-6) not in w2_read_done:
                break
            loads.pop(0); f(); k += 1
    def fillers_n(n):
        out = []
        for _ in range(n):
            out.append(lambda: issue_n(1))
        return out
    def ensure_issued(kind, d):
        while any(k == kind and dd == d for k, dd, _ in loads):
            kk, dd, f = loads[0]
            if kk == "w" and dd >= 6 and (dd-6) not in w2_read_done:
                do_w2_read(dd-6)
            loads.pop(0); f()
    def do_w2_read(d):
        if d in w2_read_done: return
        ensure_issued("w", d)
        w2_read(d)
        if d < 3:
            WLG(f"w2r{d}")
        w2_read_done.add(d)
    issue_n(la)
    do_w2_read(0)
    p2_mfma(0, fillers_n(7))
    for d in (1,2,3,4,5):
        issue_n(4)
        do_w2_read(d)
    STAMP()
    for d in range(1, 9):
        ensure_issued("h", d)
        issue_n(3)
        do_w2_read(d)
        h_check(d)
        if d == 1: STAMP()
        A("s_nop 0")
        p2_mfma(d, fillers_n(7))
    assert not loads
    STAMP()
    for jj in (1,2,3):
        A(f"s_xor_b32 s3, {sW}, {jj}")
        A(f"s_mul_i32 s3, s3, 15360")
        A(f"v_add_u32 v{T+jj}, s3, {vL16}")
    A(f"s_mul_i32 s3, {sW}, 15360")
    A(f"v_add_u32 v{T}, s3, {vL16}")
    A("s_barrier")
    A("s_nop 2")
    for mt in range(5):
        for jj in (1,2,3):
            DS("red", f"ds_write_b128 v{T+jj}, {a4(A2(mt,jj))} offset:{(jj-1)*5120 + mt*1024}")
    R = 76
    for mt in range(5):
        for k in range(4):
            A(f"v_accvgpr_read_b32 v{R+4*mt+k}, a{A2(mt,0)+k}")
    A("s_waitcnt lgkmcnt(0)"); lg.clear()
    A("s_barrier")
    for i in range(3):
        for mt in range(5):
            DS(f"rr{i}", f"ds_read_b128 {v4(R+20+(i*5+mt)*4)}, v{T} offset:{i*5120 + mt*1024}")
    for i in range(3):
        WLG(f"rr{i}")
        for mt in range(5):
            for k in (0,2):
                a = R+4*mt+k; b = R+20+(i*5+mt)*4+k
                A(f"v_pk_add_f32 v[{a}:{a+1}], v[{a}:{a+1}], v[{b}:{b+1}]")
    STAMP()
    A(f"s_lshl_b32 s3, {sQ}, 2")
    A(f"s_add_u32 s3, s3, {sW}")
    A(f"s_mul_i32 s4, s3, 20480")
    A(f"s_add_u32 s4, s4, {PB}")
    A(f"s_cmp_eq_u32 {sW}, {sS}")
    A("s_cbranch_scc1 L_final")
    A(f"s_mul_i32 s3, {sS}, 5120")
    A(f"s_add_u32 s4, s4, s3")
    A(f"s_add_u32 s3, s4, 4096")
    for mt in range(5):
        for k in range(4):
            A(f"v_bfi_b32 v{R+4*mt+k}, 3, v{PM+k}, v{R+4*mt+k}")
        if mt < 4:
            A(f"buffer_store_dwordx4 {v4(R+4*mt)}, {vL16}, {SRD_WS}, s4 offen offset:{mt*1024} sc1")
        else:
            A(f"buffer_store_dwordx4 {v4(R+4*mt)}, {vL16}, {SRD_WS}, s3 offen sc1")
    A("s_branch L_fin")
    LB("L_final")
    for i in (1,2,3):
        A(f"s_xor_b32 s3, {sS}, {i}")
        A(f"s_mul_i32 s3, s3, 5120")
        A(f"s_add_u32 s{24+i}, s4, s3")
        A(f"s_add_u32 s{27+i}, s{24+i}, 4096")
    A(f"v_and_b32 v{T+4}, 15, {vL}")
    A(f"v_lshrrev_b32 v{T+5}, 4, {vL}")
    A(f"v_mul_u32_u24 v{T+6}, 1152, v{T+4}")
    A(f"v_lshl_add_u32 v{T+6}, v{T+5}, 3, v{T+6}")
    A(f"s_cmp_lt_u32 {sP}, 6")
    A(f"s_cselect_b32 s3, 8, 16")
    A(f"v_cmp_gt_u32 vcc, s3, v{T+4}")
    A(f"v_mov_b32 v{T+8}, 0x7fff0000")
    A("s_nop 1")
    A(f"v_cndmask_b32 v{T+7}, v{T+8}, v{T+6}, vcc")
    A(f"s_mul_i32 s4, {sP}, {72*1152}")
    A(f"s_lshl_b32 s3, {sR}, 7")
    A(f"s_add_u32 s4, s4, s3")
    A(f"s_lshl_b32 s3, {sS}, 5")
    A(f"s_add_u32 s4, s4, s3")
    LB("L_p2poll")
    for i in (1,2,3):
        for mt in range(5):
            b = R+20+((i-1)*5+mt)*4
            if mt < 4:
                A(f"buffer_load_dwordx4 {v4(b)}, {vL16}, {SRD_WS}, s{24+i} offen offset:{mt*1024} sc1")
            else:
                A(f"buffer_load_dwordx4 {v4(b)}, {vL16}, {SRD_WS}, s{27+i} offen sc1")
    A(f"v_mov_b32 {vBAD}, 0")
    A("s_waitcnt vmcnt(0)")
    for i in range(15):
        b = R+20+i*4
        for k in range(4):
            A(f"v_bitop3_b32 {vBAD}, {vBAD}, v{b+k}, v{PM+k} bitop3:0xf6")
    A(f"v_and_b32 {vBAD}, 3, {vBAD}")
    A(f"v_cmp_ne_u32 vcc, 0, {vBAD}")
    A("s_cbranch_vccz L_p2ok")
    SPIN("L_p2ok")
    A("s_branch L_p2poll")
    LB("L_p2ok")
    STAMP()
    for mt in range(5):
        for i in range(3):
            for k in (0,2):
                a = R+4*mt+k; b = R+20+(i*5+mt)*4+k
                A(f"v_pk_add_f32 v[{a}:{a+1}], v[{a}:{a+1}], v[{b}:{b+1}]")
        for k in (0,2):
            a = R+4*mt+k
            A(f"v_pk_add_f32 v[{a}:{a+1}], v[{a}:{a+1}], v[{B2+k}:{B2+k+1}]")
        o = T+10+2*mt
        A(f"v_cvt_pk_bf16_f32 v{o}, v{R+4*mt}, v{R+4*mt+1}")
        A(f"v_cvt_pk_bf16_f32 v{o+1}, v{R+4*mt+2}, v{R+4*mt+3}")
        A(f"s_add_u32 s3, s4, {mt*16*1152}")
        vo = f"v{T+7}" if mt == 4 else f"v{T+6}"
        A(f"buffer_store_dwordx2 v[{o}:{o+1}], {vo}, {SRD_OUT}, s3 offen")
    LB("L_fin")
    if diag:
        STAMP()
        A("s_waitcnt vmcnt(0) lgkmcnt(0)")
        A("s_memrealtime s[16:17]")
        A("s_lshl_b32 s3, s2, 2")
        A(f"s_add_u32 s3, s3, {sW}")
        A("s_lshl_b32 s3, s3, 6")
        A("s_mov_b64 exec, 1")
        for i in range(1, nst[0]):
            A(f"s_sub_u32 s4, s{70+2*i}, s70")
            A(f"v_mov_b32 v{T}, s4")
            A(f"buffer_store_dword v{T}, off, {SRD_WS}, s3 offset:{4*i}")
        A("s_waitcnt lgkmcnt(0)")
        A(f"v_mov_b32 v{T}, s16")
        A(f"buffer_store_dword v{T}, off, {SRD_WS}, s3 offset:0")
    A("s_endpgm")
    LB("L_end_wait")
    A("s_waitcnt lgkmcnt(0)")
    LB("L_end")
    A("s_endpgm")
    body = "\n".join(L)
    hdr = open("standalone__dense_activation_squared_relu__sampling.s.ref").read().split("; Override")[0]
    txt = hdr + f"""; @launch grid=(256,1,1) block=(256,1,1) lds=163840
.amdgcn_target "amdgcn-amd-amdhsa--gfx950"
.text
.globl {NAME}
.p2align 8
.type {NAME},@function
{NAME}:
{body}
.section .rodata,"a"
.p2align 6
.amdhsa_kernel {NAME}
  .amdhsa_next_free_vgpr 480
  .amdhsa_next_free_sgpr 102
  .amdhsa_accum_offset 256
  .amdhsa_group_segment_fixed_size 0
  .amdhsa_kernarg_size 64
  .amdhsa_user_sgpr_count 2
  .amdhsa_user_sgpr_kernarg_segment_ptr 1
  .amdhsa_system_sgpr_workgroup_id_x 1
.end_amdhsa_kernel
"""
    return txt

if __name__ == "__main__":
    out = sys.argv[1]
    kw = {}
    for a in sys.argv[2:]:
        k, v = a.split("=")
        kw[k] = eval(v)
    open(out, "w").write(build(**kw))
```

```python
import sys, os
NAME = "standalone__dense_activation_squared_relu__sampling_kernel"

def build(diag=False, diag2=0, rot=(1,0), rot2=(2,0), spinmax=0x40000, N=14, N0=None, N2=None, pdelay=(6,10,12), psleep=2,
          upos=3, prot=1, sw=1, npos=(3,3), post1={9:'W14',10:'W15',12:'H14',13:'H17'}, post2={9:'W17'},
          order1="W15 W16 W17 P H11 H12 R1 C1 H13 H14 H15 H16 H17", order2="P H10 H11 R1 C1 H12 H13 H14 H15 H17 H16",
          cpos=(11,9), nsp=12, ftouch=1, hdelay=(0,8),
          mpos=5, lprio=0, lppos=9, wbpos=None, wbi=31, kfall=16, tlb=1, fpos=(4,4), hsleep=0,
          ts=(14,14), dep1={10:1}, dep2={}, eslots=2, hfl='', wbdel=0, tlg=12):
    assert upos != 0 and nsp <= 15
    nobar1 = tuple(range(ts[0]+1, 18)); nobar2 = tuple(range(ts[1]+1, 18))
    def avail(ty, b, nxt):
        if ty == 1 and b == 9: return [9, 10]
        if ty == 1 and b == 10: return []
        return list(range(b, nxt))
    L = []
    def A(s): L.append("    " + s)
    def LB(s): L.append(s + ":")
    vm = []; lg = []; pend = []
    def VM(label, text):
        assert len(vm) < 60
        if pend:
            n = pend.pop()
            A(f"s_waitcnt vmcnt({n})"); del vm[:len(vm)-n]
        if " m0," in L[-1]: A("s_nop 0")
        A(text); vm.append(label)
    def DS(label, text):
        if len(lg) >= 15:
            n = 9
            A(f"s_waitcnt lgkmcnt({n})"); del lg[:len(lg)-n]
        A(text); lg.append(label)
    def WVM(label):
        idx = [i for i, x in enumerate(vm) if x == label]
        if not idx: return
        n = len(vm) - 1 - idx[-1]
        A(f"s_waitcnt vmcnt({n})"); del vm[:idx[-1]+1]
    def WLG(label):
        idx = [i for i, x in enumerate(lg) if x == label]
        if not idx: return
        n = len(lg) - 1 - idx[-1]
        A(f"s_waitcnt lgkmcnt({n})"); del lg[:idx[-1]+1]
    def WLG0():
        if lg: A("s_waitcnt lgkmcnt(0)"); lg.clear()
    def SPIN(lab):
        A("s_add_u32 s69, s69, 1")
        A(f"s_cmp_gt_u32 s69, {spinmax}")
        A(f"s_cbranch_scc1 {lab}")
    def STAMP(i):
        if diag and (not diag2 or i in (0, 10)): A(f"s_memtime s[{70+2*i}:{71+2*i}]")
    def STAMPB(t):
        if diag2 == 1 and t < 9: A(f"s_memtime s[{72+2*t}:{73+2*t}]")
        if diag2 == 2 and 9 <= t < 18: A(f"s_memtime s[{72+2*(t-9)}:{73+2*(t-9)}]")
    def STAMPE(k):
        if diag2 == 3: A(f"s_memtime s[{72+2*k}:{73+2*k}]")
    HB = 0x1000000; PB = 0x1600000; XT = 0x1500000
    HJ = 18*32*1024 + 16384
    KB = 1024
    MBX = 163840 - 256
    HANDS = {1: 26*KB, 2: 152*KB}
    sJ, sI, sP, sC, sW = "s5", "s6", "s7", "s8", "s9"
    SRD_X, SRD_W1, SRD_W2, SRD_WS, SRD_OUT, SRD_B1, SRD_B2, SRD_DBG = ("s[32:35]","s[36:39]","s[40:43]","s[44:47]","s[48:51]","s[52:55]","s[56:59]","s[60:63]")
    vL = "v2"
    T = 32
    def v4(b): return f"v[{b}:{b+3}]"
    def v2(b): return f"v[{b}:{b+1}]"
    def SRD(base, lo, nbytes):
        A(f"s_mov_b32 s{base}, s{lo}"); A(f"s_mov_b32 s{base+1}, s{lo+1}")
        A(f"s_mov_b32 s{base+2}, {nbytes}"); A(f"s_mov_b32 s{base+3}, 0x20000")
    def lds_map(ty):
        X = {}; W = {}; XF_ = {}; WF_ = {}
        if ty == 1:
            for t in range(9):
                X[t] = (t % 4)*26*KB; W[t] = X[t] + 10*KB; XF_[t] = WF_[t] = (t-3 if t >= 4 else -1)
            for t, o, f in ((9,104,-1),(10,120,-1),(11,136,-1),(12,26,6),(13,52,7),(14,78,8),(15,0,9),(16,104,10),(17,120,10)):
                W[t] = o*KB; WF_[t] = f
            for t, o, f in ((9,42,6),(10,68,7),(11,94,8),(12,16,9),(13,42,10),(14,68,10),(15,94,12),(16,136,12),(17,146,12)):
                X[t] = o*KB; XF_[t] = f
        else:
            for t in range(9):
                X[t] = (t % 4)*24*KB; W[t] = X[t] + 16*KB; XF_[t] = WF_[t] = (t-3 if t >= 4 else -1)
            for t in range(9, 16): W[t] = (96 + 8*(t-9))*KB; WF_[t] = -1
            W[16] = 24*KB; WF_[16] = 6; W[17] = 48*KB; WF_[17] = 7
            for t, o, f in ((9,32,6),(10,56,7),(11,72,8),(12,0,9),(13,32,10),(14,56,11),(15,72,12),(16,0,13),(17,96,11)):
                X[t] = o*KB; XF_[t] = f
        nob = nobar1 if ty == 1 else nobar2
        def nb(t):
            while t in nob: t += 1
            return t
        for D_ in (XF_, WF_):
            for t in D_:
                if D_[t] >= 0: D_[t] = nb(D_[t])
        xs = 10*KB if ty == 1 else 16*KB; ws = 16*KB if ty == 1 else 8*KB
        def rel(t): return 10 if (ty == 1 and t == 10) else nb(t+1)
        regs = [(X[t], X[t]+xs, XF_[t], rel(t)) for t in range(18)] + [(W[t], W[t]+ws, WF_[t], rel(t)) for t in range(18)]
        regs.append((MBX, 163840, -1, 99))
        regs.append((HANDS[ty], HANDS[ty]+4096, ts[ty-1], 99))
        for a in range(len(regs)):
            for b in range(a+1, len(regs)):
                A_, B_ = regs[a], regs[b]
                if A_[0] < B_[1] and B_[0] < A_[1]:
                    assert A_[3] <= B_[2] or B_[3] <= A_[2], (ty, a, b, A_, B_)
        return X, W, XF_, WF_
    def masks(src, PM, tmp):
        ops = [f"v_and_b32 v{tmp}, 3, {vL}", f"v_lshlrev_b32 v{tmp}, 3, v{tmp}", f"v_lshrrev_b32 v{tmp}, v{tmp}, v{src}"]
        for k in range(4):
            ops.append(f"v_bfe_u32 v{tmp+1}, v{tmp}, {2*k}, 1")
            ops.append(f"v_bfe_u32 v{tmp+2}, v{tmp}, {2*k+1}, 1")
            ops.append(f"v_lshl_or_b32 v{PM+k}, v{tmp+2}, 16, v{tmp+1}")
        return ops
    GF = 8192
    tail = []

    A("s_cmp_ge_u32 s2, 256")
    A("s_cbranch_scc1 L_end")
    A("s_load_dwordx16 s[16:31], s[0:1], 0")
    STAMP(0)
    A("v_lshrrev_b32 v1, 6, v0")
    A(f"v_and_b32 {vL}, 63, v0")
    A(f"v_readfirstlane_b32 s69, v1")
    A(f"s_and_b32 {sJ}, s2, 7")
    A(f"s_lshr_b32 {sI}, s2, 3")
    A(f"s_lshr_b32 {sP}, s2, 5")
    A(f"s_and_b32 {sC}, {sI}, 3")
    A("v_and_b32 v1, 3, v1")
    A(f"v_lshrrev_b32 v{T}, 3, {vL}")
    A(f"v_lshrrev_b32 v{T+1}, 4, {vL}")
    A(f"s_and_b32 {sW}, s69, 3")
    A("s_cmp_lt_u32 s69, 4")
    A("s_cbranch_scc1 L_comp")

    vXD, vW1D, vW2D = "v3", "v4", "v5"
    sXB, sW1B, sT, sLW, sTMP, sTMP2, sW2B, sHB = "s10","s11","s13","s14","s15","s64","s65","s12"
    A(f"v_and_b32 v{T+2}, 7, {vL}")
    A(f"v_and_b32 v{T+3}, 1, v1")
    A(f"v_lshl_add_u32 v{T+3}, v{T+3}, 2, v{T+1}")
    A(f"v_xor_b32 v{T+4}, v{T+2}, v{T+3}")
    A(f"v_mul_u32_u24 v{T+5}, 1152, v{T}")
    A(f"v_lshl_add_u32 {vXD}, v{T+4}, 4, v{T+5}")
    A(f"v_and_b32 v{T+6}, 1, {vL}")
    A(f"s_lshl_b32 {sLW}, {sW}, 10")
    A("s_mov_b32 s34, 589824"); A("s_mov_b32 s35, 0x20000")
    A("s_mov_b32 s38, 5308416"); A("s_mov_b32 s39, 0x20000")
    A(f"s_mul_i32 s4, {sJ}, 1152")
    A(f"s_cmp_eq_u32 {sP}, 6")
    A("s_cbranch_scc1 L_ld2")
    def mod9(dst):
        A(f"s_mul_i32 s3, {dst}, 7282")
        A(f"s_lshr_b32 s3, s3, 16")
        A(f"s_mul_i32 s3, s3, 9")
        A(f"s_sub_u32 {dst}, {dst}, s3")
    A(f"s_min_u32 {sP}, {sP}, 6")
    A(f"v_bfe_u32 v{T+4}, {vL}, 1, 3")
    A(f"v_xor_b32 v{T+4}, v{T+4}, v{T+3}")
    A(f"v_lshl_add_u32 v{T+4}, v{T+4}, 1, v{T+6}")
    A(f"v_lshlrev_b32 v{T+4}, 4, v{T+4}")
    A(f"v_mul_u32_u24 v{T+7}, 9216, v{T+1}")
    A(f"v_add_u32 {vW1D}, v{T+4}, v{T+7}")
    A(f"s_mul_i32 {sXB}, {sP}, 10")
    A(f"s_add_u32 {sXB}, {sXB}, {sW}")
    A(f"s_mul_i32 {sXB}, {sXB}, {8*1152}")
    A(f"s_lshl_b32 s3, {sC}, 8")
    A(f"s_add_u32 s4, s4, s3")
    A(f"s_mul_i32 {sW1B}, {sW}, {8*9216}")
    A(f"s_add_u32 {sW1B}, {sW1B}, s4")
    A(f"s_mul_i32 {sT}, {sP}, {rot[0]}")
    if rot[1]:
        A(f"s_mul_i32 s3, {sC}, {rot[1]}")
        A(f"s_add_u32 {sT}, {sT}, s3")
    if rot[0]*6 + rot[1]*3 >= 9: mod9(sT)
    A(f"s_cmp_ge_u32 {sW}, 2")
    A("s_waitcnt lgkmcnt(0)")
    A("s_mov_b64 s[32:33], s[16:17]")
    A("s_mov_b64 s[36:37], s[18:19]")
    A("s_cbranch_scc1 L_ld1b")

    def loader(ty, half):
        tg = f"{ty}{'ab'[half]}"
        vm.clear(); lg.clear()
        X, W, XFR, WFR = lds_map(ty)
        own = 2 if ty == 1 else 1
        nfr = (3 if half == 0 else 2) if ty == 1 else 4
        HM = 16; PM = 20; vL16 = "v14"; vBAD = "v15"; vH2 = "v13"; vFA = "v12"; vF = "v11"; vG = "v10"
        def vHW(wn): return f"v{16+wn}"
        def vHF(f): return vL16 if f == 0 else f"v{5+f+1}"
        HS = 64
        def HR(t, f): return HS + ((t - 9 - own)*nfr + f)*4
        Q = []
        def stage_ops(t):
            def hdr():
                A(f"s_lshl_b32 {sTMP}, {sT}, 7")
                A(f"s_add_u32 {sTMP}, {sTMP}, {sXB}")
                A(f"s_mul_i32 {sTMP2}, {sT}, {64*9216}")
                A(f"s_add_u32 {sTMP2}, {sTMP2}, {sW1B}")
                if t < 8:
                    A(f"s_add_u32 {sT}, {sT}, 1")
                    A(f"s_cmp_eq_u32 {sT}, 9")
                    A(f"s_cselect_b32 {sT}, 0, {sT}")
            def xp(i, first=False):
                def f():
                    if first: hdr()
                    A(f"s_add_u32 m0, {sLW}, {X[t] + i*4096}")
                    if i: A(f"s_add_u32 s3, {sTMP}, {i*36864}")
                    VM(f"S{t}", f"buffer_load_dwordx4 {vXD}, {SRD_X}, {'s3' if i else sTMP} offen lds")
                return f
            def wp(gk, e):
                def f():
                    if ty == 1:
                        A(f"s_add_u32 m0, {sLW}, {W[t] + gk*8192 + e*4096}")
                        o = (32*gk+4*e)*9216
                    else:
                        A(f"s_add_u32 m0, {sLW}, {W[t] + gk*4096}")
                        o = 32*gk*9216
                    if o: A(f"s_add_u32 s3, {sTMP2}, {o}")
                    VM(f"S{t}", f"buffer_load_dwordx4 {vW1D}, {SRD_W1}, {'s3' if o else sTMP2} offen lds")
                return f
            if ty == 1:
                fs = [xp(0, True), wp(0,0)] + ([xp(2)] if half == 0 else []) + [wp(0,1), xp(1), wp(1,0), wp(1,1)]
            else:
                fs = [xp(0, True), wp(0,0), xp(1), xp(2), wp(1,0), xp(3)]
            return [(f"S{t}", XFR[t], f) for f in fs]
        def w2_ops(t):
            def wp(gk, hf, first):
                def f():
                    if first:
                        A(f"s_mul_i32 {sTMP2}, s{16+t-9}, {64*1152}")
                        A(f"s_add_u32 {sTMP2}, {sTMP2}, {sW2B}")
                    if ty == 1:
                        A(f"s_add_u32 m0, {sLW}, {W[t] + gk*8192 + hf*4096}")
                        o = (32*gk+16*hf)*1152
                    else:
                        A(f"s_add_u32 m0, {sLW}, {W[t] + gk*4096}")
                        o = 32*gk*1152
                    if o: A(f"s_add_u32 s3, {sTMP2}, {o}")
                    VM(f"W{t}", f"buffer_load_dwordx4 {vW2D}, {SRD_W2}, {'s3' if o else sTMP2} offen lds")
                return f
            if ty == 1: fs = [wp(0,0,True), wp(0,1,False), wp(1,0,False), wp(1,1,False)]
            else: fs = [wp(0,0,True), wp(1,0,False)]
            return [(f"W{t}", WFR[t], f) for f in fs]
        def gate(t):
            u = t - 9 - own
            bits = 3 << (2*u)
            lb = f"{tg}_{t}"
            A(f"s_and_b32 s3, s66, {bits}")
            A(f"s_cbranch_scc1 L_hp{lb}")
            LB(f"L_hg{lb}")
            R_ = [f"L_hp{lb}:", "s_add_u32 s69, s69, 1", f"s_cmp_gt_u32 s69, {spinmax}", f"s_cbranch_scc1 L_hg{lb}",
                  f"s_and_b32 s3, s69, {kfall-1}", f"s_cbranch_scc1 L_hl{lb}",
                  "s_and_b32 s3, s66, 0xf0000", f"s_cbranch_scc1 L_hl{lb}",
                  "buffer_wbl2 sc1", "s_waitcnt vmcnt(0)",
                  "s_mov_b64 exec, 0xf0000",
                  f"buffer_store_dword v{T+9}, {vFA}, {SRD_WS}, s29 offen sc1",
                  "s_mov_b64 exec, -1", "s_mov_b32 s25, 1",
                  f"L_hl{lb}:",
                  f"buffer_load_dword {vF}, {vFA}, {SRD_WS}, s28 offen sc1",
                  "s_cmp_eq_u32 s25, 0", f"s_cbranch_scc1 L_hf{lb}",
                  f"buffer_load_dword {vG}, {vFA}, {SRD_WS}, s29 offen sc1",
                  f"L_hf{lb}:", "s_waitcnt vmcnt(0)",
                  f"v_cmp_ne_u32 vcc, s67, {vF}", f"v_cmp_ne_u32 s[26:27], v{T+9}, {vG}",
                  "s_nop 2", "s_or_b32 s26, s26, 0xf0000", "s_and_b32 s26, vcc_lo, s26", "s_and_b32 s66, s66, s26",
                  f"s_and_b32 s3, s66, {bits}", f"s_cbranch_scc0 L_hg{lb}"]
            if hsleep: R_.append(f"s_sleep {hsleep}")
            R_.append(f"s_branch L_hp{lb}")
            tail.extend([x if x.endswith(":") else "    " + x for x in R_])
        def hdma(t, f):
            sa = f"s{92+t-9}"
            a = vH2 if (ty == 1 and half == 0 and f == 2) else vHF(f)
            return (f"s_add_u32 m0, s31, {X[t] + f*2048}", f"buffer_load_dwordx4 {a}, {SRD_WS}, {sa} offen sc1 lds")
        def h_ops(t):
            def op(f):
                def fn():
                    if f == 0: gate(t)
                    m, ld = hdma(t, f)
                    A(m); VM(f"H{t}", ld)
                return fn
            return [(f"H{t}", max(9, XFR[t]), op(f)) for f in range(nfr)]
        def aux(label, fn): return (label, -1, fn)
        def setup2():
            SRD(40, 22, 5308416)
            SRD(44, 30, 0x10000000)
            SRD(60, 28, 256)
            setup3()
        def nonce_load():
            A(f"s_lshl_b32 s3, {sW}, 12")
            VM("nonce", f"buffer_load_dword v{T+9}, off, {SRD_DBG}, s3 sc1")
        def setup3():
            SRD(48, 26, 589824)
            SRD(56, 24, 1152)
            A(f"v_lshlrev_b32 {vL16}, 4, {vL}")
            if ty == 1:
                A(f"v_mul_u32_u24 v{T+7}, 1152, v{T+1}")
                A(f"v_add_u32 {vW2D}, v{T+4}, v{T+7}")
                A(f"s_mul_i32 {sW2B}, {sJ}, 576")
                A(f"s_lshl_b32 s3, {sW}, 2")
                A(f"s_add_u32 {sW2B}, {sW2B}, s3")
                A(f"s_mul_i32 {sW2B}, {sW2B}, 1152")
                A(f"s_lshl_b32 s3, {sC}, 8")
                A(f"s_add_u32 {sW2B}, {sW2B}, s3")
                if half == 0:
                    A(f"v_lshlrev_b32 v{T+8}, 3, v{T+1}")
                    A(f"s_lshl_b32 s4, {sJ}, 5")
                else:
                    A(f"v_and_b32 v{T+8}, 1, v{T+1}")
                    A(f"v_lshlrev_b32 v{T+8}, 3, v{T+8}")
                    A(f"v_and_b32 v{T+10}, 32, {vL}")
                    A(f"v_add_u32 v{T+8}, v{T+8}, v{T+10}")
                    A(f"s_lshr_b32 s4, {sJ}, 1")
                    A(f"s_lshl_b32 s4, s4, 6")
                    A(f"s_and_b32 s66, {sJ}, 1")
                    A(f"s_lshl_b32 s66, s66, 4")
                    A(f"s_add_u32 s4, s4, s66")
                A(f"s_add_u32 s30, s3, s4")
                A(f"s_and_b32 s66, {sP}, {1 if sw else 0}")
                A(f"s_lshl_b32 s67, {sC}, 1")
                A(f"s_add_u32 s16, s67, s66")
                A(f"s_xor_b32 s17, s16, 1")
                A(f"s_mul_i32 s3, {sP}, {prot}")
                A(f"s_lshr_b32 s3, s3, 1") if sw else None
                A(f"s_mul_i32 s4, s3, 86")
                A(f"s_lshr_b32 s4, s4, 8")
                A(f"s_mul_i32 s4, s4, 3")
                A(f"s_sub_u32 s3, s3, s4")
                pos = 18
                for k in range(4):
                    if k == upos:
                        A(f"s_mov_b32 s{pos}, 8"); pos += 1
                    if k == 3: break
                    A(f"s_add_u32 s4, s3, 1")
                    A(f"s_lshl_b32 s4, s4, 1")
                    A(f"s_xor_b32 s{pos}, s16, s4")
                    A(f"s_xor_b32 s{pos+1}, s{pos}, 1")
                    pos += 2
                    if k < 2:
                        A(f"s_add_u32 s3, s3, 1")
                        A(f"s_cmp_eq_u32 s3, 3")
                        A(f"s_cselect_b32 s3, 0, s3")
                assert pos == 25
                A(f"s_mul_i32 {sHB}, {sP}, 5")
                if half == 1:
                    A(f"s_cmp_eq_u32 {sP}, 6")
                    A(f"s_cselect_b32 s3, 0, 3")
                    A(f"s_add_u32 {sHB}, {sHB}, s3")
                else:
                    A(f"s_cmp_eq_u32 {sP}, 6")
                    A(f"s_cselect_b32 s3, 1, 2")
                    A(f"s_lshl_b32 s3, s3, 10")
                    A(f"v_add_u32 {vH2}, s3, {vL16}")
                fm = 0 if half == 0 else 3
                A(f"s_and_b32 s3, {sW}, 1")
                A(f"s_lshl_b32 s4, s3, 10")
                A(f"s_add_u32 s4, s4, {fm*2048}")
            else:
                A(f"v_add_u32 {vW2D}, v{T+4}, v{T+5}")
                A(f"s_mul_i32 {sW2B}, {sJ}, 576")
                A(f"s_lshl_b32 s3, {sW}, 3")
                A(f"s_add_u32 {sW2B}, {sW2B}, s3")
                A(f"s_mul_i32 {sW2B}, {sW2B}, 1152")
                A(f"s_add_u32 {sW2B}, {sW2B}, 1024")
                A(f"v_lshlrev_b32 v{T+8}, 3, v{T+1}")
                A(f"s_and_b32 s4, {sJ}, 3")
                A(f"s_lshl_b32 s4, s4, 5")
                A(f"s_add_u32 s30, s4, 1024")
                A(f"s_mov_b32 s16, 8")
                A(f"s_lshl_b32 s3, {sC}, 1")
                for k in range(8):
                    A(f"s_add_u32 s4, s3, {k}")
                    A(f"s_and_b32 s{17+k}, s4, 7")
                A(f"s_lshl_b32 {sHB}, {sC}, 3")
                A(f"s_lshr_b32 s4, {sW}, 1")
                A(f"s_lshl_b32 s3, s4, 2")
                A(f"s_add_u32 {sHB}, {sHB}, s3")
                A(f"s_and_b32 s3, {sW}, 1")
                A(f"s_lshl_b32 s4, s4, 13")
                A(f"s_lshl_b32 s66, s3, 10")
                A(f"s_add_u32 s4, s4, s66")
            A(f"s_mov_b32 s31, s4")
            for f in range(1, nfr): A(f"v_add_u32 {vHF(f)}, {f*1024}, {vL16}")
            if ty == 1:
                A(f"s_lshl_b32 s25, {sP}, 4")
                A(f"s_lshl_b32 s4, {sC}, 1")
                A(f"s_add_u32 s4, s4, s25")
                A(f"s_lshl_b32 s27, s3, 3")
                A(f"s_add_u32 s25, s25, s27")
                A(f"s_mov_b32 s26, s25")
                A(f"v_and_b32 {vFA}, 1, {vL}")
                A(f"v_bfe_u32 {vF}, {vL}, 1, 1")
                A(f"v_lshl_add_u32 {vFA}, {vFA}, 3, {vF}")
            else:
                A(f"s_mul_i32 s25, {sHB}, 52")
                A(f"s_lshr_b32 s25, s25, 8")
                A(f"s_add_u32 s26, {sHB}, 3")
                A(f"s_mul_i32 s26, s26, 52")
                A(f"s_lshr_b32 s26, s26, 8")
                for m_ in range(32): assert (m_*52) >> 8 == m_ // 5
                A(f"s_lshl_b32 s25, s25, 4")
                A(f"s_lshl_b32 s26, s26, 4")
                A(f"s_lshl_b32 s27, s3, 3")
                A(f"s_add_u32 s25, s25, s27")
                A(f"s_add_u32 s26, s26, s27")
                A(f"s_lshl_b32 s4, {sC}, 2")
                A(f"s_add_u32 s4, s4, 112")
                A(f"v_and_b32 {vFA}, 3, {vL}")
            A(f"v_add_u32 {vFA}, s4, {vFA}")
            for t in range(9+own, 18):
                u = t - 9 - own
                if ty == 1 and u == 2*upos:
                    for e in range(2):
                        if e == 0: A(f"s_lshr_b32 s4, {sHB}, 2")
                        else:
                            A(f"s_add_u32 s4, {sHB}, {nfr-1}")
                            A(f"s_min_u32 s4, s4, 31")
                            A(f"s_lshr_b32 s4, s4, 2")
                        A(f"s_lshl_b32 s4, s4, 1")
                        A(f"s_add_u32 s4, s4, s3")
                        A(f"s_add_u32 s4, s4, 112")
                        A(f"v_writelane_b32 {vFA}, s4, {2*u+e}")
                else:
                    A(f"s_add_u32 s4, s{16+t-9}, s25")
                    A(f"v_writelane_b32 {vFA}, s4, {2*u}")
                    if ty == 2: A(f"s_add_u32 s4, s{16+t-9}, s26")
                    A(f"v_writelane_b32 {vFA}, s4, {2*u+1}")
            A(f"v_lshlrev_b32 {vFA}, 2, {vFA}")
            A(f"s_mul_i32 s28, {sJ}, {HJ}")
            A(f"s_add_u32 s28, s28, {HB + HJ - 16384}")
            A(f"s_add_u32 s29, s28, {GF}")
            A(f"s_and_b32 s4, s{16+own}, 6")
            A(f"s_add_u32 s25, s25, s4")
            A(f"s_add_u32 s26, s26, s4")
            A(f"s_lshl_b32 s25, s25, 2")
            A(f"s_lshl_b32 s26, s26, 2")
            A(f"s_add_u32 s52, s25, s28")
            A(f"s_add_u32 s53, s26, s28")
            A(f"s_mov_b32 s25, 0")
            A(f"s_mov_b32 s66, -1")
            A(f"v_mov_b32 {vG}, 0")
            A(f"s_lshl_b32 s3, s3, 5")
            A(f"s_add_u32 {sHB}, {sHB}, s3")
            A(f"s_lshl_b32 {sHB}, {sHB}, 10")
            A(f"s_mul_i32 s3, {sJ}, {HJ}")
            A(f"s_add_u32 {sHB}, {sHB}, s3")
            A(f"s_add_u32 {sHB}, {sHB}, {HB}")
            for t in range(9+own, 18):
                A(f"s_lshl_b32 s3, s{16+t-9}, 16")
                A(f"s_add_u32 s{92+t-9}, s3, {sHB}")
            VM("bias", f"buffer_load_dwordx2 {v2(T+14)}, v{T+8}, {SRD_B2}, s30 offen")
            A(f"v_mov_b32 v{T+10}, {MBX}")
            A("s_getreg_b32 s67, hwreg(HW_REG_XCC_ID, 0, 4)")
            A("s_lshl_b32 s67, s67, 28")
            A("s_mov_b32 s69, 0")
            if tlb and half == 0:
                A(f"v_and_b32 v{T+11}, 1, {vL}")
                A(f"v_mul_u32_u24 v{T+12}, {HJ-128}, v{T+11}")
                A(f"v_mul_u32_u24 v{T+13}, {163840-128}, v{T+11}")
                A(f"s_mul_i32 s3, {sJ}, {HJ}")
                A(f"s_add_u32 s3, s3, {HB}")
                A(f"v_add_u32 v{T+12}, s3, v{T+12}")
                A(f"s_mul_i32 s3, {sI}, 163840")
                A(f"s_add_u32 s3, s3, {PB}")
                A(f"v_add_u32 v{T+13}, s3, v{T+13}")
                A(f"v_cmp_gt_u32 vcc, 2, {vL}")
                A(f"s_lshl_b32 s3, {sW}, 29")
                A(f"v_cndmask_b32 v{T+12}, v{T+13}, v{T+12}, vcc")
                A("s_mov_b64 exec, 15")
                VM("tlb", f"buffer_load_dword v{T+13}, v{T+12}, {SRD_WS}, s3 offen sc1")
                A(f"v_mul_u32_u24 v{T+12}, {575*1152}, v{T+11}")
                A(f"s_mul_i32 s3, {sJ}, {576*1152}")
                A(f"s_xor_b32 s4, {sW}, 1")
                A(f"s_lshl_b32 s4, s4, 29")
                A(f"s_add_u32 s3, s3, s4")
                A("s_mov_b64 exec, 3")
                VM("tlb", f"buffer_load_dword v{T+13}, v{T+12}, {SRD_W2}, s3 offen")
                A("s_mov_b64 exec, -1")
            if ftouch and (half == 1 or ty == 2):
                A(f"v_lshlrev_b32 v{T+12}, 6, {vL}")
                A(f"s_lshl_b32 s3, {sI}, 8")
                A(f"s_add_u32 s3, s3, s28")
                A(f"s_xor_b32 s4, {sW}, 3")
                A(f"s_lshl_b32 s4, s4, 29")
                A(f"s_add_u32 s3, s3, s4")
                A("s_mov_b64 exec, 15")
                VM("tlb", f"buffer_load_dword v{T+13}, v{T+12}, {SRD_WS}, s3 offen")
                A("s_mov_b64 exec, -1")
        def nonce_get():
            WVM("nonce")
            A(f"s_cmp_lg_u32 {sW}, 0")
            A(f"s_cbranch_scc1 L_nsk{tg}")
            A(f"v_readfirstlane_b32 s68, v{T+9}")
            A(f"s_cmp_eq_u32 s68, 0")
            A(f"s_cbranch_scc1 L_nr{tg}")
            LB(f"L_nok{tg}")
            tail.extend([f"L_nr{tg}:", "    s_add_u32 s69, s69, 1", f"    s_cmp_gt_u32 s69, {spinmax}", f"    s_cbranch_scc1 L_nok{tg}",
                         f"    buffer_load_dword v{T+9}, off, {SRD_DBG}, 0 sc1", "    s_waitcnt vmcnt(0)",
                         f"    v_readfirstlane_b32 s68, v{T+9}", "    s_cmp_eq_u32 s68, 0", f"    s_cbranch_scc1 L_nr{tg}", f"    s_branch L_nok{tg}"])
            A("s_mov_b32 s69, 0")
            DS("mbx", f"ds_write_b32 v{T+10}, v{T+9}")
            LB(f"L_nsk{tg}")
        for t in range(9):
            Q += stage_ops(t)
            if t == npos[0] and half == 0: Q.append(("aux", -1, nonce_load))
        Q.insert(N0 or N, ("aux", -1, setup2))
        rem = list(range(9+own, 18))
        nob = nobar1 if ty == 1 else nobar2
        bars = [t for t in range(18) if t not in nob]
        def refresh(): VM("R1", f"buffer_load_dword v{HS+8}, {vFA}, {SRD_WS}, s28 offen sc1")
        def check():
            WVM("R1")
            A(f"v_cmp_ne_u32 vcc, s67, v{HS+8}")
            A(f"s_and_b32 s66, s66, vcc_lo")
        def spoll():
            if hdelay[ty-1]: A(f"s_sleep {hdelay[ty-1]}")
            LB(f"L_sp{tg}")
            A(f"s_load_dwordx2 s[26:27], s[44:45], s52")
            if ty == 2: A(f"s_load_dwordx2 s[56:57], s[44:45], s53")
            A(f"s_add_u32 s52, s52, 512")
            if ty == 2: A(f"s_add_u32 s53, s53, 512")
            A(f"s_add_u32 s68, s68, 1")
            A(f"s_cmp_gt_u32 s68, {nsp}")
            A("s_waitcnt lgkmcnt(0)")
            A(f"s_cbranch_scc1 L_sq{tg}")
            A(f"s_cmp_lg_u64 s[26:27], s[54:55]")
            A(f"s_cbranch_scc1 L_sp{tg}")
            if ty == 2:
                A(f"s_cmp_lg_u64 s[56:57], s[54:55]")
                A(f"s_cbranch_scc1 L_sp{tg}")
            A(f"s_andn2_b32 s66, s66, 15")
            LB(f"L_sq{tg}")
        for t in range(9, 15 if ty == 1 else 18): Q += w2_ops(t)
        toks = (order1 if ty == 1 else order2).split()
        for k, x in enumerate(toks):
            if x == 'P': Q.append(("aux", 9, spoll))
            elif x == 'R1': Q.append(("R1", 9, refresh))
            elif x == 'C1': Q.append(("aux", cpos[ty-1], check))
            else: Q += (w2_ops if x[0] == 'W' else h_ops)(int(x[1:]))
        def need(t): return [f"S{t}"] if t < 9 else [f"W{t}", f"H{t}"]
        def pump(b, nd, upto=None):
            while Q:
                lab, fb, fn = Q[0]
                if fb >= b: break
                if not nd and upto and not any(q[0] == upto for q in Q): break
                Nw = N0 if (N0 and b == 0) else (N2 if (N2 and b >= 9) else N)
                if len(vm) >= Nw and lab != "aux":
                    pending_needed = any(x in nd for x in vm) or any(q[0] in nd for q in Q)
                    if not pending_needed:
                        if upto is None or not any(q[0] == upto for q in Q): break
                    pend.append(Nw - 1)
                Q.pop(0); fn()
                assert not pend
        assert kfall & (kfall-1) == 0
        prevb = -1
        for bi, b in enumerate(bars):
            nxt = bars[bi+1] if bi+1 < len(bars) else 18
            av = avail(ty, b, nxt)
            nd = [x for t in av for x in need(t)]
            if b <= 9 or any(x in nd for x in vm) or any(q[0] in nd for q in Q): pump(b, nd)
            assert not any(q[0] in nd for q in Q), (ty, half, b)
            if b == 9:
                A(f"ds_read_b32 v{T+9}, v{T+10}")
                A("s_waitcnt lgkmcnt(0)"); lg.clear()
                A(f"v_readfirstlane_b32 s3, v{T+9}")
                A(f"s_xor_b32 s67, s67, s3")
                A(f"s_mov_b32 s68, 0")
                A(f"s_mov_b32 s54, s67")
                A(f"s_mov_b32 s55, s67")
            if (post1 if ty == 1 else post2).get(b): pump(b, [], upto=(post1 if ty == 1 else post2).get(b))
            for x in nd: WVM(x)
            WLG0()
            STAMPB(b)
            A("s_barrier")
            if b == 0: STAMP(1)
            if b == 4: STAMP(2)
            if b == 8: STAMP(3)
            if b == 9: STAMP(4)
            if b == 11: STAMP(5)
            if b == 13: STAMP(6)
            if nxt == 18: STAMP(7)
            if lprio and b == lppos: A(f"s_setprio {lprio}")
            if b == wbpos and ty == 1 and half == 1:
                A(f"s_lshl_b32 s3, {sI}, 2")
                A(f"s_add_u32 s3, s3, {sW}")
                A(f"s_cmp_lg_u32 s3, {wbi*4+3}")
                A("s_cbranch_scc1 L_nowb")
                if wbdel: A(f"s_sleep {wbdel}")
                A("buffer_wbl2 sc1")
                LB("L_nowb")
            if b == npos[1] and half == 0:
                assert not any(q[2] is nonce_load for q in Q)
                nonce_get()
            prevb = b
        assert not Q
        for o in masks(T+9, PM, HS): A(o)
        S = 24
        SEL = 40
        PX = 48
        def P(k): return HS + 4*k
        A(f"v_and_b32 v{T+4}, 15, {vL}")
        A(f"v_lshrrev_b32 v{T+5}, 2, v{T+4}")
        A(f"v_xor_b32 v{T+5}, v{T+5}, v{T+1}")
        if ty == 1 and half == 1: A(f"v_and_b32 v{T+5}, 1, v{T+5}")
        A(f"v_and_b32 v{T+6}, 1, {vL}")
        A(f"v_lshlrev_b32 v{T+6}, 4, v{T+6}")
        A(f"v_mov_b32 v{T+7}, 0x3f80")
        A(f"v_lshlrev_b32 v{T+6}, v{T+6}, v{T+7}")
        A(f"v_bfe_u32 v{T+7}, {vL}, 1, 1")
        A(f"v_lshl_or_b32 v{T+5}, v{T+5}, 1, v{T+7}")
        for h in range(2):
            A(f"v_lshlrev_b32 v{S+2*h}, 16, v{T+14+h}")
            A(f"v_and_b32 v{S+2*h+1}, 0xffff0000, v{T+14+h}")
        A(f"v_mul_u32_u24 v{T+4}, 1152, v{T+4}")
        A(f"v_add_u32 v{T+4}, v{T+4}, v{T+8}")
        for k in range(2):
            A(f"v_cmp_eq_u32 vcc, {k}, v{T+5}")
            A(f"v_mov_b32 v{SEL+k}, 0")
            A(f"v_mov_b32 v{SEL+4+k}, 0")
            A(f"v_cndmask_b32 v{SEL+2+k}, 0, v{T+6}, vcc")
        for k in range(4):
            A(f"v_xor_b32 v{PX+k}, 0x10001, v{PM+k}")
            A(f"v_mov_b32 v{S+4+k}, v{S+k}")
        A(f"s_lshl_b32 s3, {sI}, 3")
        A(f"s_add_u32 s3, s3, {sJ}")
        A(f"s_mul_i32 s26, s3, 20480")
        A(f"s_add_u32 s26, s26, {PB}")
        if diag:
            A("s_lshl_b32 s101, s69, 8"); A("s_add_u32 s101, s101, s68")
        A("s_mov_b32 s69, 0")
        def poll(nsrc, ld, fin, tag):
            if half == 1: A(f"s_sleep {pdelay[2]}")
            else:
                A(f"s_sleep {pdelay[0]}")
                A(f"s_cmp_eq_u32 {sW}, 0")
                A(f"s_cbranch_scc1 L_poll{tag}")
                A(f"s_sleep {pdelay[1]-pdelay[0]}")
            LB(f"L_poll{tag}")
            for k in range(nsrc):
                A(f"s_bitcmp0_b32 s28, {k}")
                A(f"s_cbranch_scc1 L_pl{tag}{k}")
                A(ld(k))
                LB(f"L_pl{tag}{k}")
            A("s_waitcnt vmcnt(0)")
            for k in range(nsrc):
                A(f"s_bitcmp0_b32 s28, {k}")
                A(f"s_cbranch_scc1 L_pc{tag}{k}")
                for e in range(4): A(f"v_xor_b32 v{P(k)+e}, v{P(k)+e}, v{PX+e}")
                A(f"v_bitop3_b32 {vBAD}, v{P(k)}, v{P(k)+1}, v{P(k)+2} bitop3:0x80")
                A(f"v_bitop3_b32 {vBAD}, {vBAD}, v{P(k)+3}, s27 bitop3:0x80")
                A(f"v_cmp_ne_u32 vcc, s27, {vBAD}")
                A(f"s_cbranch_vccnz L_pc{tag}{k}")
                A(f"v_mfma_f32_16x16x32_bf16 {v4(S)}, {v4(SEL+2)}, {v4(P(k))}, {v4(S)}")
                A(f"v_mfma_f32_16x16x32_bf16 {v4(S+4)}, {v4(SEL)}, {v4(P(k))}, {v4(S+4)}")
                A(f"s_bitset0_b32 s28, {k}")
                LB(f"L_pc{tag}{k}")
            A("s_cmp_eq_u32 s28, 0")
            A(f"s_cbranch_scc1 L_pok{tag}")
            SPIN(f"L_pok{tag}")
            if psleep: A(f"s_sleep {psleep}")
            A(f"s_branch L_poll{tag}")
            LB(f"L_pok{tag}")
            STAMP(9)
            A("s_nop 7")
            fin()
            A("s_branch L_fin")
        A("s_mov_b32 s27, 0x10001")
        if half == 0:
            if ty == 2:
                A(f"s_cmp_ge_u32 {sW}, 2"); A(f"s_cselect_b32 s28, 0, 0x7f")
            else:
                A(f"s_lshl_b32 s3, {sW}, 3"); A(f"s_or_b32 s3, s3, {sP}")
                A(f"s_cmp_eq_u32 s3, 14"); A(f"s_cselect_b32 s28, 0, 0x7f")
            A(f"s_add_u32 s26, s26, {sLW}")
            for k in range(7):
                A(f"s_xor_b32 s3, {sJ}, {k+1}")
                A(f"s_mul_i32 s3, s3, 2560")
                A(f"s_add_u32 s{16+k}, s26, s3")
            A(f"s_lshl_b32 s3, {sW}, 11")
            A(f"s_add_u32 s3, s3, {HANDS[ty]}")
            A(f"v_add_u32 v6, s3, {vL16}")
            if ty == 1:
                A(f"s_mul_i32 s4, {sP}, 80")
            else:
                A(f"s_lshl_b32 s4, {sC}, 7")
                A(f"s_lshr_b32 s3, {sJ}, 2")
                A(f"s_lshl_b32 s3, s3, 6")
                A(f"s_add_u32 s4, s4, s3")
            A(f"s_lshl_b32 s3, {sW}, 5")
            A(f"s_add_u32 s4, s4, s3")
            A(f"s_mul_i32 s4, s4, 1152")
            A(f"s_add_u32 s30, s30, s4")
            A(f"s_add_u32 s31, s30, {16*1152}")
            A("s_barrier")
            STAMP(8)
            A("s_cmp_eq_u32 s28, 0")
            A("s_cbranch_scc1 L_fin")
            A(f"ds_read_b128 {v4(P(0))}, v6")
            A(f"ds_read_b128 {v4(P(1))}, v6 offset:1024")
            A("s_waitcnt lgkmcnt(0)")
            for k in range(2):
                for e in (0, 2): A(f"v_pk_add_f32 {v2(S+4*k+e)}, {v2(S+4*k+e)}, {v2(P(k)+e)}")
            def fin():
                for k in range(2):
                    A(f"v_cvt_pk_bf16_f32 v{T+10+2*k}, v{S+4*k}, v{S+4*k+1}")
                    A(f"v_cvt_pk_bf16_f32 v{T+11+2*k}, v{S+4*k+2}, v{S+4*k+3}")
                    A(f"buffer_store_dwordx2 {v2(T+10+2*k)}, v{T+4}, {SRD_OUT}, s{30+k} offen")
            poll(7, lambda k: f"buffer_load_dwordx4 {v4(P(k))}, {vL16}, {SRD_WS}, s{16+k} offen sc1", fin, tg)
        else:
            A(f"s_cmp_eq_u32 {sW}, 2"); A(f"s_cselect_b32 s28, 0xf, 0")
            A(f"s_cmp_eq_u32 {sP}, 6"); A(f"s_cselect_b32 s28, 0, s28")
            A(f"v_lshrrev_b32 v{T+5}, 5, {vL}")
            A(f"v_mul_u32_u24 v{T+5}, {2560-512}, v{T+5}")
            A(f"v_add_u32 v6, v{T+5}, {vL16}")
            for k in range(4): A(f"s_add_u32 s{16+k}, s26, {2048 + k*5120}")
            A(f"s_mul_i32 s4, {sP}, {80*1152}")
            A(f"s_add_u32 s30, s30, s4")
            A(f"s_add_u32 s30, s30, {64*1152}")
            A("s_barrier")
            STAMP(8)
            A("s_cmp_eq_u32 s28, 0")
            A("s_cbranch_scc1 L_fin")
            def fin():
                A("s_mov_b32 exec_lo, 0")
                for e in range(4): A(f"v_mov_b32 v{S+e}, v{S+4+e}")
                A("s_mov_b32 exec_lo, -1")
                A(f"v_cvt_pk_bf16_f32 v{T+10}, v{S}, v{S+1}")
                A(f"v_cvt_pk_bf16_f32 v{T+11}, v{S+2}, v{S+3}")
                A(f"buffer_store_dwordx2 {v2(T+10)}, v{T+4}, {SRD_OUT}, s30 offen")
            poll(4, lambda k: f"buffer_load_dwordx4 {v4(P(k))}, v6, {SRD_WS}, s{16+k} offen sc1", fin, tg)

    loader(1, 0)
    LB("L_ld1b")
    loader(1, 1)
    LB("L_ld2")
    A(f"v_bfe_u32 v{T+4}, {vL}, 1, 2")
    A(f"v_xor_b32 v{T+4}, v{T+4}, v{T+1}")
    A(f"v_lshl_add_u32 v{T+4}, v{T+4}, 1, v{T+6}")
    A(f"v_lshlrev_b32 v{T+4}, 4, v{T+4}")
    A(f"v_and_b32 v{T+7}, 3, v{T}")
    A(f"v_lshrrev_b32 v{T+8}, 5, {vL}")
    A(f"v_lshl_add_u32 v{T+7}, v{T+8}, 3, v{T+7}")
    A(f"v_mul_u32_u24 v{T+7}, 9216, v{T+7}")
    A(f"v_add_u32 {vW1D}, v{T+4}, v{T+7}")
    A(f"s_lshl_b32 {sXB}, {sC}, 4")
    A(f"s_add_u32 {sXB}, {sXB}, {sW}")
    A(f"s_mul_i32 {sXB}, {sXB}, {8*1152}")
    A(f"s_and_b32 s3, {sW}, 1")
    A(f"s_lshl_b32 s3, s3, 4")
    A(f"s_lshr_b32 {sW1B}, {sW}, 1")
    A(f"s_lshl_b32 {sW1B}, {sW1B}, 2")
    A(f"s_add_u32 {sW1B}, {sW1B}, s3")
    A(f"s_mul_i32 {sW1B}, {sW1B}, 9216")
    A(f"s_add_u32 {sW1B}, {sW1B}, s4")
    A(f"s_add_u32 {sW1B}, {sW1B}, 1024")
    A(f"s_mul_i32 {sT}, {sC}, {rot2[0]}")
    if rot2[1]: A(f"s_add_u32 {sT}, {sT}, {rot2[1]}")
    if rot2[0]*3 + rot2[1] >= 9: mod9(sT)
    A("s_waitcnt lgkmcnt(0)")
    A("s_mov_b64 s[32:33], s[16:17]")
    A("s_mov_b64 s[36:37], s[18:19]")
    loader(2, 0)

    LB("L_comp")
    A("s_memrealtime s[64:65]")
    A(f"s_cmp_eq_u32 {sP}, 6")
    A("s_cbranch_scc1 L_comp2")
    def compute(ty):
        vm.clear(); lg.clear()
        X, W, XFR, WFR = lds_map(ty)
        MT = 5 if ty == 1 else 4
        def vXA(wn, ks): return f"v{6+wn*2+ks}"
        def vWA(wn, jj): return f"v{48+wn*2+jj}"
        def vXL(wn): return f"v{54+wn}"
        vL16, vHS, vHS4, vHL = "v14", "v12", "v13", "v15"
        HM = 16; PM = 20; B1 = 24
        def AC(ph, mt, jj): return (172 if ph == 1 else 212) + (mt*2+jj)*4
        def XF(buf, mt): return 60 + buf*20 + mt*4
        def WF(buf, jj): return 140 + buf*8 + jj*4
        KEEP = 212; HU = 232
        sOWN, sNON = "s11", "s12"
        def hstore(mt, fl, o=None):
            if o is None: o = HU + 4*mt
            if ty == 2 or mt < 2: return f"buffer_store_dwordx4 {v4(o)}, {vL16}, {SRD_WS}, {sOWN} offen offset:{mt*1024} {fl}"
            if mt < 4: return f"buffer_store_dwordx4 {v4(o)}, {vHS}, {SRD_WS}, {sOWN} offen offset:{mt*1024} {fl}"
            return f"buffer_store_dwordx4 {v4(o)}, {vHS4}, {SRD_WS}, {sOWN} offen {fl}"
        if ty == 1: A(f"s_min_u32 {sP}, {sP}, 6")
        A(f"v_lshlrev_b32 {vL16}, 4, {vL}")
        A(f"v_and_b32 v{T+4}, 15, {vL}")
        A(f"v_lshrrev_b32 v{T+5}, 1, v{T+4}")
        A(f"v_xor_b32 v{T+5}, v{T+5}, v{T+1}")
        A(f"v_lshlrev_b32 v{T+4}, 7, v{T+4}")
        A(f"v_lshl_add_u32 {vXA(0,0)}, v{T+5}, 4, v{T+4}")
        A(f"v_lshrrev_b32 v{T+4}, 2, {vL}")
        A(f"v_and_b32 v{T+6}, 3, {vL}")
        A(f"v_lshlrev_b32 v{T+6}, 3, v{T+6}")
        if ty == 1:
            A(f"v_mov_b32 {vXL(0)}, {vL16}")
            A(f"v_and_b32 v{T+5}, 7, v{T+4}")
            A(f"v_lshlrev_b32 v{T+7}, 1, v1")
            A(f"v_xor_b32 v{T+5}, v{T+5}, v{T+7}")
            A(f"v_lshl_add_u32 v{T+7}, v{T+4}, 8, v{T+6}")
        else:
            A(f"s_lshr_b32 s3, {sW}, 1")
            A(f"s_lshl_b32 s3, s3, 13")
            A(f"v_add_u32 {vXA(0,0)}, s3, {vXA(0,0)}")
            A(f"v_add_u32 {vXL(0)}, s3, {vL16}")
            A(f"v_bfe_u32 v{T+5}, v{T+4}, 1, 2")
            A(f"v_and_b32 v{T+7}, 1, v1")
            A(f"v_lshlrev_b32 v{T+7}, 1, v{T+7}")
            A(f"v_xor_b32 v{T+5}, v{T+5}, v{T+7}")
            A(f"v_lshl_add_u32 v{T+7}, v{T+4}, 7, v{T+6}")
        A(f"v_lshl_add_u32 {vWA(0,0)}, v{T+5}, 5, v{T+7}")
        A(f"v_xor_b32 {vWA(0,1)}, 32, {vWA(0,0)}")
        A(f"v_xor_b32 {vXA(0,1)}, 64, {vXA(0,0)}")
        for wn in (1, 2):
            for k in range(2):
                A(f"v_add_u32 {vXA(wn,k)}, {wn*65536}, {vXA(0,k)}")
                A(f"v_add_u32 {vWA(wn,k)}, {wn*65536}, {vWA(0,k)}")
            A(f"v_add_u32 {vXL(wn)}, {wn*65536}, {vXL(0)}")
        A(f"v_lshlrev_b32 v{T+8}, 3, v{T+1}")
        A(f"s_mul_i32 s4, {sJ}, 1152")
        if ty == 1:
            A(f"s_lshl_b32 s3, {sC}, 8")
            A(f"s_add_u32 s4, s4, s3")
            A(f"s_lshl_b32 s3, {sW}, 6")
        else:
            A(f"s_add_u32 s4, s4, 1024")
            A(f"s_and_b32 s3, {sW}, 1")
            A(f"s_lshl_b32 s3, s3, 6")
        A(f"s_add_u32 s3, s3, s4")
        A("s_waitcnt lgkmcnt(0)")
        if ty == 1:
            A(f"s_or_b32 s4, s2, {sW}")
            A(f"s_cmp_lg_u32 s4, 0")
            A(f"s_cbranch_scc1 L_nonn")
            SRD(60, 28, 256)
            A(f"s_mul_i32 {sNON}, s64, 0x9E3779B1")
            A(f"s_lshr_b32 s4, {sNON}, 15")
            A(f"s_xor_b32 {sNON}, {sNON}, s4")
            A(f"s_mul_i32 {sNON}, {sNON}, 0x85EBCA6B")
            A(f"s_lshr_b32 s4, {sNON}, 13")
            A(f"s_xor_b32 {sNON}, {sNON}, s4")
            A(f"s_or_b32 {sNON}, {sNON}, 1")
            A(f"s_and_b32 {sNON}, {sNON}, 0xFFFFFEFF")
            A(f"v_mov_b32 v{T+9}, {sNON}")
            A("s_mov_b64 exec, 1")
            A(f"buffer_store_dword v{T+9}, off, {SRD_DBG}, 0 sc1")
            A("s_mov_b64 exec, -1")
            LB("L_nonn")
        SRD(52, 20, 9216)
        VM("bias", f"buffer_load_dwordx2 {v2(T+10)}, v{T+8}, {SRD_B1}, s3 offen")
        VM("bias", f"buffer_load_dwordx2 {v2(T+12)}, v{T+8}, {SRD_B1}, s3 offen offset:32")
        SRD(44, 30, 0x10000000)
        if ty == 1:
            A(f"s_lshl_b32 s3, {sC}, 2")
            A(f"s_add_u32 s3, s3, {sW}")
            A(f"s_lshl_b32 s3, s3, 5")
            A(f"s_mul_i32 s4, {sP}, 5")
            A(f"s_add_u32 s3, s3, s4")
            A(f"s_cmp_eq_u32 {sP}, 6")
            A(f"s_cselect_b32 s4, 0x7fff0000, 0")
            A(f"v_add_u32 {vHS}, s4, {vL16}")
            A(f"v_add_u32 {vHS4}, 4096, {vHS}")
            A(f"s_lshr_b32 s4, {sW}, 1")
            if sw:
                A(f"s_xor_b32 s4, s4, {sP}")
                A(f"s_and_b32 s4, s4, 1")
            A(f"s_mul_i32 s4, s4, {X[10]-X[9]}")
            A(f"s_add_u32 s4, s4, {X[9]}")
            A(f"s_and_b32 s10, {sW}, 1")
            A(f"s_lshl_b32 s10, s10, 10")
            A(f"s_add_u32 s4, s4, s10")
            A(f"v_add_u32 {vHL}, s4, {vL16}")
        else:
            A(f"s_and_b32 s10, {sW}, 1")
            A(f"s_add_u32 s3, s10, 16")
            A(f"s_lshl_b32 s3, s3, 5")
            A(f"s_lshl_b32 s4, {sC}, 3")
            A(f"s_add_u32 s3, s3, s4")
            A(f"s_lshr_b32 s4, {sW}, 1")
            A(f"s_lshl_b32 s4, s4, 2")
            A(f"s_add_u32 s3, s3, s4")
            A(f"s_lshl_b32 s10, s10, 10")
            A(f"s_add_u32 s10, s10, {X[9]}")
            A(f"v_add_u32 {vHL}, s10, {vXL(0)}")
        A(f"s_lshl_b32 s3, s3, 10")
        A(f"s_mul_i32 {sOWN}, {sJ}, {HJ}")
        A(f"s_add_u32 {sOWN}, {sOWN}, s3")
        A(f"s_add_u32 {sOWN}, {sOWN}, {HB}")
        A(f"s_lshl_b32 s3, {sI}, 3")
        A(f"s_lshl_b32 s4, {sW}, 1")
        A(f"s_add_u32 s3, s3, s4")
        A(f"s_lshl_b32 s3, s3, 3")
        A(f"s_add_u32 s3, s3, {sJ}")
        A(f"s_mul_i32 s16, s3, 2560")
        A(f"s_add_u32 s16, s16, {PB}")
        A(f"s_add_u32 s17, s16, 20480")
        A(f"s_xor_b32 s18, s4, {sJ}")
        A(f"s_mov_b32 s19, 0x07060302")
        A(f"s_mov_b32 s20, 0x10001")
        if ty == 1:
            A(f"v_lshrrev_b32 v{T+5}, 5, {vL}")
            A(f"v_mul_u32_u24 v{T+5}, {20480-512}, v{T+5}")
            A(f"v_add_u32 v3, v{T+5}, {vHS}")
        A(f"v_add_u32 v4, {HANDS[ty]}, {vL16}")
        A(f"v_mov_b32 v5, {MBX}")
        A(f"v_lshlrev_b32 v{HM+1}, 9, {vL}")
        A("s_getreg_b32 s21, hwreg(HW_REG_XCC_ID, 0, 4)")
        A("s_lshl_b32 s21, s21, 28")
        if ty == 1:
            A(f"s_lshl_b32 s3, {sP}, 4")
            A(f"s_lshl_b32 s4, {sC}, 1")
            A(f"s_add_u32 s3, s3, s4")
            A(f"s_lshr_b32 s4, {sW}, 1")
            A(f"s_add_u32 s3, s3, s4")
            A(f"s_and_b32 s4, {sW}, 1")
            A(f"s_lshl_b32 s4, s4, 3")
            A(f"s_add_u32 s3, s3, s4")
        else:
            A(f"s_lshl_b32 s3, {sC}, 2")
            A(f"s_add_u32 s3, s3, 112")
            A(f"s_add_u32 s3, s3, {sW}")
        A(f"s_lshl_b32 s3, s3, 2")
        A(f"s_mul_i32 s22, {sJ}, {HJ}")
        A(f"s_add_u32 s22, s22, s3")
        A(f"s_add_u32 s22, s22, {HB + HJ - 16384}")
        WVM("bias")
        for k in range(2):
            for h in range(2):
                src = T+10+2*k+h
                A(f"v_lshlrev_b32 v{B1+4*k+2*h}, 16, v{src}")
                A(f"v_and_b32 v{B1+4*k+2*h+1}, 0xffff0000, v{src}")
        def read_ops(n):
            t, ks = divmod(n, 2); bf = n % 4
            ops = []
            for jj in range(2):
                for hf in range(2):
                    off = W[t] + (ks*8192 + hf*4096 if ty == 1 else ks*4096 + hf*2048)
                    ops.append((f"r{n}_0", f"ds_read_b64_tr_b16 {v2(WF(bf,jj)+2*hf)}, {vWA(off>>16,jj)} offset:{off & 0xffff}"))
            for mt in range(MT):
                if t < 9:
                    off = X[t] + mt*2048; a = vXA(off >> 16, ks)
                else:
                    off = X[t] + mt*2048 + ks*1024; a = vXL(off >> 16)
                ops.append((f"r{n}_{mt}", f"ds_read_b128 {v4(XF(bf,mt))}, {a} offset:{off & 0xffff}"))
            return ops
        def mf(n, mt, jj):
            ph = 1 if n < 18 else 2; bf = n % 4
            c = v4(B1+4*jj) if n == 0 else ("0" if n == 18 else v4(AC(ph,mt,jj)))
            A(f"v_mfma_f32_16x16x32_bf16 {v4(AC(ph,mt,jj))}, {v4(WF(bf,jj))}, {v4(XF(bf,mt))}, {c}")
        extra = []
        def emit(op):
            if isinstance(op, tuple):
                if op[0] == 'vm': VM("hst", op[1])
                elif op[0] == 'wait': WLG(op[1])
                elif op[0] == 'f1':
                    A("s_waitcnt vmcnt(0)"); vm.clear()
                    A(f"s_mov_b64 exec, {(1 << nsp) - 1}")
                    A(f"buffer_store_dword v{HM}, v{HM+1}, {SRD_WS}, s22 offen")
                    A("s_mov_b64 exec, -1")
                else: DS("hw", op[1])
            else: A(op)
        rq = []
        done = [-1]
        def rd_ok(): return rq and rq[0][0] - 4 <= done[0]
        def fill(k):
            n = 0
            while n < k and rd_ok(): DS(*rq.pop(0)[1]); n += 1
            while n < k and extra: emit(extra.pop(0)); n += 1
        def flush_reads(upto):
            while rq and rq[0][0] <= upto:
                assert rd_ok(); DS(*rq.pop(0)[1])
        def group(n):
            flush_reads(n)
            for mt in range(MT):
                WLG(f"r{n}_{mt}")
                for jj in range(2):
                    mf(n, mt, jj); fill(2)
                    if (n-18)*2*MT + mt*2 + jj == fpos[ty-1]: emit(('f1',))
            done[0] = n
        def epi_ops(mt):
            ops = []
            t = T + 8*(mt % 2)
            for jj in range(2):
                a = AC(1, mt, jj)
                for k in range(4): ops.append(f"v_max_f32 v{t+4*jj+k}, 0, v{a+k}")
                for k in (0, 2): ops.append(f"v_pk_mul_f32 {v2(t+4*jj+k)}, {v2(t+4*jj+k)}, {v2(t+4*jj+k)}")
            h = HU + 4*mt
            for k in range(4): ops.append(f"v_cvt_pk_bf16_f32 v{h+k}, v{t+2*k}, v{t+2*k+1}")
            if diag2 == 3 and mt in (2, 3): ops.append(f"s_memtime s[{72+2*(3+3*(mt-2))}:{73+2*(3+3*(mt-2))}]")
            ops.append(('vm', hstore(mt, hfl)))
            if diag2 == 3 and mt in (2, 3): ops.append(f"s_memtime s[{72+2*(4+3*(mt-2))}:{73+2*(4+3*(mt-2))}]")
            ops.append(('ds', f"ds_write_b128 {vHL}, {v4(h)} offset:{mt*2048}"))
            if diag2 == 3 and mt in (2, 3): ops.append(f"s_memtime s[{72+2*(5+3*(mt-2))}:{73+2*(5+3*(mt-2))}]")
            return ops
        nob = nobar1 if ty == 1 else nobar2
        dep = dep1 if ty == 1 else dep2
        bars = [t for t in range(18) if t not in nob]
        g = 0
        for bi, b in enumerate(bars):
            nxt = bars[bi+1] if bi+1 < len(bars) else 18
            d = 0 if b in (0, 9) else dep.get(b, 1)
            if b == 9:
                while g < 16: group(g); g += 1
                flush_reads(17)
                STAMPE(1)
                assert not extra
                q = []
                cnt = 0
                for mt in range(MT):
                    for n in (16, 17):
                        WLG(f"r{n}_{mt}")
                        for jj in range(2):
                            mf(n, mt, jj); cnt += 1
                            if cnt % 4 == 3 and mt >= 1: q += epi_ops(mt-1)
                            for _ in range(eslots):
                                if q: emit(q.pop(0))
                STAMPE(2)
                while q: emit(q.pop(0))
                for op in epi_ops(MT-1): emit(op)
                done[0] = 17; g = 18
                STAMP(4)
            while g < 2*b - d: group(g); g += 1
            flush_reads(99)
            WLG0()
            if b == 9 and fpos[ty-1] < 0: emit(('f1',))
            STAMPB(b)
            A("s_barrier")
            if b == 0: STAMP(1)
            if b == 4: STAMP(2)
            if b == 8: STAMP(3); STAMPE(0)
            if b == 11: STAMP(5)
            if b == 13: STAMP(6)
            if nxt < 18:
                for t_ in avail(ty, b, nxt):
                    for n in (2*t_, 2*t_+1): rq.extend((n, o) for o in read_ops(n))
            if b == mpos:
                DS("non", f"ds_read_b32 v{T+9}, v5")
                extra.append(('wait', "non"))
                extra.append(f"v_xor_b32 v{HM}, s21, v{T+9}")
                extra.extend(masks(T+9, PM, T+10))
        n0 = 2*ts[ty-1]; NK = 36 - n0
        assert g == n0 - 1 and NK <= 8 and not rq and not extra
        busy = (n0-1) % 4
        wt = [172+8*k for k in range(5)] + [WF(bf,0) for bf in range(4) if bf != busy]
        xr = [XF(bf,m) for bf in range(4) if bf != busy for m in range(5)]
        segs = [(0,1),(2,3)] + ([(4,)] if MT == 5 else [])
        seq = [(n, mt) for sg in segs for n in range(n0, 36) for mt in sg]
        tr = []
        for k, (n, mt) in enumerate(seq):
            t, ks = divmod(n, 2)
            if mt == 0:
                for jj in range(2):
                    for hf in range(2):
                        off = W[t] + (ks*8192 + hf*4096 if ty == 1 else ks*4096 + hf*2048)
                        tr.append((-1, f"x{k}", f"ds_read_b64_tr_b16 {v2(wt[n-n0]+4*jj+2*hf)}, {vWA(off>>16,jj)} offset:{off & 0xffff}"))
            off = X[t] + mt*2048 + ks*1024
            tr.append((k - len(xr), f"x{k}", f"ds_read_b128 {v4(xr[k % len(xr)])}, {vXL(off >> 16)} offset:{off & 0xffff}"))
        used = [-1]
        def tfill(kk):
            c = 0
            while c < kk and tr and tr[0][0] <= used[0] and len(lg) < tlg:
                _, lab, tx = tr.pop(0); DS(lab, tx); c += 1
            while c < kk and extra:
                for o in extra.pop(0): (LB(o[:-1]) if o.endswith(":") else A(o))
                c += 1
        PKS = [24, 28, 32, 36, 40]
        def pub_ops(si):
            ops = []
            if si < 2:
                for jj in range(2):
                    o = PKS[2*si+jj]
                    for n_, mt in enumerate(segs[si]):
                        a = AC(2, mt, jj)
                        for e in range(2): ops.append([f"v_perm_b32 v{o+2*n_+e}, v{a+2*e+1}, v{a+2*e}, s19"])
                    for e in range(4): ops.append([f"v_bfi_b32 v{o+e}, s20, v{PM+e}, v{o+e}"])
                    av = vL16 if (si == 0 or ty == 2) else vHS
                    lb = f"{ty}_{si}{jj}"
                    ops.append([f"s_cmp_eq_u32 s18, {jj}", f"s_cbranch_scc1 L_own{lb}",
                                f"buffer_store_dwordx4 {v4(o)}, {av}, {SRD_WS}, s{16+jj} offen offset:{si*1024} sc1", f"L_bk{lb}:"])
                    tail.extend([f"L_own{lb}:"] + [f"    ds_write_b128 v4, {v4(AC(2,mt,jj))} offset:{mt*1024}" for mt in segs[si]] + [f"    s_branch L_bk{lb}"])
            else:
                o = PKS[4]
                for jj in range(2):
                    a = AC(2, 4, jj)
                    for e in range(2): ops.append([f"v_perm_b32 v{o+2*jj+e}, v{a+2*e+1}, v{a+2*e}, s19"])
                for e in range(4): ops.append([f"v_bfi_b32 v{o+e}, s20, v{PM+e}, v{o+e}"])
                ops.append([f"buffer_store_dwordx4 {v4(o)}, v3, {SRD_WS}, s16 offen offset:2048 sc1"])
            return ops
        for mt in range(MT):
            WLG(f"r{g}_{mt}")
            for jj in range(2):
                mf(g, mt, jj); tfill(2)
        segend = {}
        acc_ = 0
        for si, sg in enumerate(segs):
            acc_ += NK*len(sg); segend[acc_ + 1] = si
        for k, (n, mt) in enumerate(seq):
            while any(x[1] == f"x{k}" for x in tr):
                assert tr[0][0] <= used[0]
                _, lab, tx = tr.pop(0); DS(lab, tx)
            WLG(f"x{k}")
            for jj in range(2):
                A(f"v_mfma_f32_16x16x32_bf16 {v4(AC(2,mt,jj))}, {v4(wt[n-n0]+4*jj)}, {v4(xr[k % len(xr)])}, {v4(AC(2,mt,jj))}")
                if jj == 1: used[0] = k
                if jj == 1 and k in segend: extra.extend(pub_ops(segend[k]))
                tfill(2)
        STAMP(7)
        if len(extra) < 7: A("s_nop 7")
        extra.extend(pub_ops(len(segs)-1))
        tfill(999)
        STAMP(8)
        A("s_waitcnt lgkmcnt(0)")
        A("s_barrier")
        A("s_branch L_fin")
    compute(1)
    LB("L_comp2")
    compute(2)

    LB("L_fin")
    if diag:
        STAMP(10)
        A("s_waitcnt vmcnt(0) lgkmcnt(0)")
        A("s_memrealtime s[16:17]")
        A("v_lshrrev_b32 v1, 6, v0")
        A("s_lshl_b32 s3, s2, 3")
        A("v_readfirstlane_b32 s4, v1")
        A(f"s_add_u32 s3, s3, s4")
        A("s_lshl_b32 s3, s3, 6")
        A("s_mov_b64 exec, 1")
        for i in range(1, 11):
            A(f"s_sub_u32 s4, s{70+2*i}, s70")
            A(f"v_mov_b32 v{T}, s4")
            A(f"buffer_store_dword v{T}, off, {SRD_WS}, s3 offset:{4*i}")
        A(f"v_mov_b32 v{T}, s69")
        A(f"buffer_store_dword v{T}, off, {SRD_WS}, s3 offset:60")
        A(f"v_mov_b32 v{T}, s101")
        A(f"buffer_store_dword v{T}, off, {SRD_WS}, s3 offset:56")
        A("s_waitcnt lgkmcnt(0)")
        A(f"v_mov_b32 v{T}, s16")
        A(f"buffer_store_dword v{T}, off, {SRD_WS}, s3 offset:0")
    LB("L_end")
    A("s_endpgm")
    L.extend(tail)
    body = "\n".join(L)
    hdr = open("standalone__dense_activation_squared_relu__sampling.s.ref").read().split("; Override")[0]
    txt = hdr + f"""; @launch grid=(256,1,1) block=(512,1,1) lds=163840
.amdgcn_target "amdgcn-amd-amdhsa--gfx950"
.text
.globl {NAME}
.p2align 8
.type {NAME},@function
{NAME}:
{body}
.section .rodata,"a"
.p2align 6
.amdhsa_kernel {NAME}
  .amdhsa_next_free_vgpr 256
  .amdhsa_next_free_sgpr 102
  .amdhsa_accum_offset 256
  .amdhsa_group_segment_fixed_size 0
  .amdhsa_kernarg_size 64
  .amdhsa_user_sgpr_count 2
  .amdhsa_user_sgpr_kernarg_segment_ptr 1
  .amdhsa_system_sgpr_workgroup_id_x 1
.end_amdhsa_kernel
"""
    return txt

if __name__ == "__main__":
    out = sys.argv[1]
    kw = {}
    for a in sys.argv[2:]:
        k, v = a.split("=", 1)
        kw[k] = eval(v)
    open(out, "w").write(build(**kw))
```

```python
import sys, os
NAME = "standalone__dense_activation_squared_relu__sampling_kernel"

def build(diag=False, diag2=0, rot=(1,0), rot2=(2,0), spinmax=0x40000, N=14, N0=None, N2=None, pdelay=(6,10,12), psleep=2,
          upos=3, prot=1, sw=1, npos=(3,3), post1={9:'W14',10:'W15',12:'H14',13:'H17'}, post2={9:'W17'},
          order1="W15 W16 W17 P H11 H12 R1 C1 H13 H14 H15 H16 H17", order2="P H10 H11 R1 C1 H12 H13 H14 H15 H17 H16",
          cpos=(11,9), nsp=12, ftouch=1, hdelay=(0,8),
          mpos=5, lprio=0, lppos=9, wbpos=None, wbi=31, kfall=16, tlb=1, fpos=(4,4), hsleep=0,
          ts=(14,14), dep1={10:1}, dep2={}, eslots=2, hfl='', wbdel=0, tlg=12):
    assert upos != 0 and nsp <= 15
    nobar1 = tuple(range(ts[0]+1, 18)); nobar2 = tuple(range(ts[1]+1, 18))
    def avail(ty, b, nxt):
        if ty == 1 and b == 9: return [9, 10]
        if ty == 1 and b == 10: return []
        return list(range(b, nxt))
    L = []
    def A(s): L.append("    " + s)
    def LB(s): L.append(s + ":")
    vm = []; lg = []; pend = []
    def VM(label, text):
        assert len(vm) < 60
        if pend:
            n = pend.pop()
            A(f"s_waitcnt vmcnt({n})"); del vm[:len(vm)-n]
        if " m0," in L[-1]: A("s_nop 0")
        A(text); vm.append(label)
    def DS(label, text):
        if len(lg) >= 15:
            n = 9
            A(f"s_waitcnt lgkmcnt({n})"); del lg[:len(lg)-n]
        A(text); lg.append(label)
    def WVM(label):
        idx = [i for i, x in enumerate(vm) if x == label]
        if not idx: return
        n = len(vm) - 1 - idx[-1]
        A(f"s_waitcnt vmcnt({n})"); del vm[:idx[-1]+1]
    def WLG(label):
        idx = [i for i, x in enumerate(lg) if x == label]
        if not idx: return
        n = len(lg) - 1 - idx[-1]
        A(f"s_waitcnt lgkmcnt({n})"); del lg[:idx[-1]+1]
    def WLG0():
        if lg: A("s_waitcnt lgkmcnt(0)"); lg.clear()
    def SPIN(lab):
        A("s_add_u32 s69, s69, 1")
        A(f"s_cmp_gt_u32 s69, {spinmax}")
        A(f"s_cbranch_scc1 {lab}")
    def STAMP(i):
        if diag and (not diag2 or i in (0, 10)): A(f"s_memtime s[{70+2*i}:{71+2*i}]")
    def STAMPB(t):
        if diag2 == 1 and t < 9: A(f"s_memtime s[{72+2*t}:{73+2*t}]")
        if diag2 == 2 and 9 <= t < 18: A(f"s_memtime s[{72+2*(t-9)}:{73+2*(t-9)}]")
    def STAMPE(k):
        if diag2 == 3: A(f"s_memtime s[{72+2*k}:{73+2*k}]")
    def STAMPH(k):
        if diag2 == 4: A(f"s_memtime s[{72+2*k}:{73+2*k}]")
    HB = 0x1000000; PB = 0x1600000; XT = 0x1500000
    HJ = 18*32*1024 + 16384
    KB = 1024
    MBX = 163840 - 256
    HANDS = {1: 26*KB, 2: 152*KB}
    sJ, sI, sP, sC, sW = "s5", "s6", "s7", "s8", "s9"
    SRD_X, SRD_W1, SRD_W2, SRD_WS, SRD_OUT, SRD_B1, SRD_B2, SRD_DBG = ("s[32:35]","s[36:39]","s[40:43]","s[44:47]","s[48:51]","s[52:55]","s[56:59]","s[60:63]")
    vL = "v2"
    T = 32
    def v4(b): return f"v[{b}:{b+3}]"
    def v2(b): return f"v[{b}:{b+1}]"
    def SRD(base, lo, nbytes):
        A(f"s_mov_b32 s{base}, s{lo}"); A(f"s_mov_b32 s{base+1}, s{lo+1}")
        A(f"s_mov_b32 s{base+2}, {nbytes}"); A(f"s_mov_b32 s{base+3}, 0x20000")
    def lds_map(ty):
        X = {}; W = {}; XF_ = {}; WF_ = {}
        if ty == 1:
            for t in range(9):
                X[t] = (t % 4)*26*KB; W[t] = X[t] + 10*KB; XF_[t] = WF_[t] = (t-3 if t >= 4 else -1)
            for t, o, f in ((9,104,-1),(10,120,-1),(11,136,-1),(12,26,6),(13,52,7),(14,78,8),(15,0,9),(16,104,10),(17,120,10)):
                W[t] = o*KB; WF_[t] = f
            for t, o, f in ((9,42,6),(10,68,7),(11,94,8),(12,16,9),(13,42,10),(14,68,10),(15,94,12),(16,136,12),(17,146,12)):
                X[t] = o*KB; XF_[t] = f
        else:
            for t in range(9):
                X[t] = (t % 4)*24*KB; W[t] = X[t] + 16*KB; XF_[t] = WF_[t] = (t-3 if t >= 4 else -1)
            for t in range(9, 16): W[t] = (96 + 8*(t-9))*KB; WF_[t] = -1
            W[16] = 24*KB; WF_[16] = 6; W[17] = 48*KB; WF_[17] = 7
            for t, o, f in ((9,32,6),(10,56,7),(11,72,8),(12,0,9),(13,32,10),(14,56,11),(15,72,12),(16,0,13),(17,96,11)):
                X[t] = o*KB; XF_[t] = f
        nob = nobar1 if ty == 1 else nobar2
        def nb(t):
            while t in nob: t += 1
            return t
        for D_ in (XF_, WF_):
            for t in D_:
                if D_[t] >= 0: D_[t] = nb(D_[t])
        xs = 10*KB if ty == 1 else 16*KB; ws = 16*KB if ty == 1 else 8*KB
        def rel(t): return 10 if (ty == 1 and t == 10) else nb(t+1)
        regs = [(X[t], X[t]+xs, XF_[t], rel(t)) for t in range(18)] + [(W[t], W[t]+ws, WF_[t], rel(t)) for t in range(18)]
        regs.append((MBX, 163840, -1, 99))
        regs.append((HANDS[ty], HANDS[ty]+4096, ts[ty-1], 99))
        for a in range(len(regs)):
            for b in range(a+1, len(regs)):
                A_, B_ = regs[a], regs[b]
                if A_[0] < B_[1] and B_[0] < A_[1]:
                    assert A_[3] <= B_[2] or B_[3] <= A_[2], (ty, a, b, A_, B_)
        return X, W, XF_, WF_
    def masks(src, PM, tmp):
        ops = [f"v_and_b32 v{tmp}, 3, {vL}", f"v_lshlrev_b32 v{tmp}, 3, v{tmp}", f"v_lshrrev_b32 v{tmp}, v{tmp}, v{src}"]
        for k in range(4):
            ops.append(f"v_bfe_u32 v{tmp+1}, v{tmp}, {2*k}, 1")
            ops.append(f"v_bfe_u32 v{tmp+2}, v{tmp}, {2*k+1}, 1")
            ops.append(f"v_lshl_or_b32 v{PM+k}, v{tmp+2}, 16, v{tmp+1}")
        return ops
    GF = 8192
    tail = []

    A("s_cmp_ge_u32 s2, 256")
    A("s_cbranch_scc1 L_end")
    A("s_load_dwordx16 s[16:31], s[0:1], 0")
    STAMP(0)
    A("v_lshrrev_b32 v1, 6, v0")
    A(f"v_and_b32 {vL}, 63, v0")
    A(f"v_readfirstlane_b32 s69, v1")
    A(f"s_and_b32 {sJ}, s2, 7")
    A(f"s_lshr_b32 {sI}, s2, 3")
    A(f"s_lshr_b32 {sP}, s2, 5")
    A(f"s_and_b32 {sC}, {sI}, 3")
    A("v_and_b32 v1, 3, v1")
    A(f"v_lshrrev_b32 v{T}, 3, {vL}")
    A(f"v_lshrrev_b32 v{T+1}, 4, {vL}")
    A(f"s_and_b32 {sW}, s69, 3")
    A("s_cmp_lt_u32 s69, 4")
    A("s_cbranch_scc1 L_comp")

    vXD, vW1D, vW2D = "v3", "v4", "v5"
    sXB, sW1B, sT, sLW, sTMP, sTMP2, sW2B, sHB = "s10","s11","s13","s14","s15","s64","s65","s12"
    A(f"v_and_b32 v{T+2}, 7, {vL}")
    A(f"v_and_b32 v{T+3}, 1, v1")
    A(f"v_lshl_add_u32 v{T+3}, v{T+3}, 2, v{T+1}")
    A(f"v_xor_b32 v{T+4}, v{T+2}, v{T+3}")
    A(f"v_mul_u32_u24 v{T+5}, 1152, v{T}")
    A(f"v_lshl_add_u32 {vXD}, v{T+4}, 4, v{T+5}")
    A(f"v_and_b32 v{T+6}, 1, {vL}")
    A(f"s_lshl_b32 {sLW}, {sW}, 10")
    A("s_mov_b32 s34, 589824"); A("s_mov_b32 s35, 0x20000")
    A("s_mov_b32 s38, 5308416"); A("s_mov_b32 s39, 0x20000")
    A(f"s_mul_i32 s4, {sJ}, 1152")
    A(f"s_cmp_eq_u32 {sP}, 6")
    A("s_cbranch_scc1 L_ld2")
    def mod9(dst):
        A(f"s_mul_i32 s3, {dst}, 7282")
        A(f"s_lshr_b32 s3, s3, 16")
        A(f"s_mul_i32 s3, s3, 9")
        A(f"s_sub_u32 {dst}, {dst}, s3")
    A(f"s_min_u32 {sP}, {sP}, 6")
    A(f"v_bfe_u32 v{T+4}, {vL}, 1, 3")
    A(f"v_xor_b32 v{T+4}, v{T+4}, v{T+3}")
    A(f"v_lshl_add_u32 v{T+4}, v{T+4}, 1, v{T+6}")
    A(f"v_lshlrev_b32 v{T+4}, 4, v{T+4}")
    A(f"v_mul_u32_u24 v{T+7}, 9216, v{T+1}")
    A(f"v_add_u32 {vW1D}, v{T+4}, v{T+7}")
    A(f"s_mul_i32 {sXB}, {sP}, 10")
    A(f"s_add_u32 {sXB}, {sXB}, {sW}")
    A(f"s_mul_i32 {sXB}, {sXB}, {8*1152}")
    A(f"s_lshl_b32 s3, {sC}, 8")
    A(f"s_add_u32 s4, s4, s3")
    A(f"s_mul_i32 {sW1B}, {sW}, {8*9216}")
    A(f"s_add_u32 {sW1B}, {sW1B}, s4")
    A(f"s_mul_i32 {sT}, {sP}, {rot[0]}")
    if rot[1]:
        A(f"s_mul_i32 s3, {sC}, {rot[1]}")
        A(f"s_add_u32 {sT}, {sT}, s3")
    if rot[0]*6 + rot[1]*3 >= 9: mod9(sT)
    A(f"s_cmp_ge_u32 {sW}, 2")
    A("s_waitcnt lgkmcnt(0)")
    A("s_mov_b64 s[32:33], s[16:17]")
    A("s_mov_b64 s[36:37], s[18:19]")
    A("s_cbranch_scc1 L_ld1b")

    def loader(ty, half):
        tg = f"{ty}{'ab'[half]}"
        vm.clear(); lg.clear()
        X, W, XFR, WFR = lds_map(ty)
        own = 2 if ty == 1 else 1
        nfr = (3 if half == 0 else 2) if ty == 1 else 4
        HM = 16; PM = 20; vL16 = "v14"; vBAD = "v15"; vH2 = "v13"; vFA = "v12"; vF = "v11"; vG = "v10"
        def vHW(wn): return f"v{16+wn}"
        def vHF(f): return vL16 if f == 0 else f"v{5+f+1}"
        HS = 64
        def HR(t, f): return HS + ((t - 9 - own)*nfr + f)*4
        Q = []
        def stage_ops(t):
            def hdr():
                A(f"s_lshl_b32 {sTMP}, {sT}, 7")
                A(f"s_add_u32 {sTMP}, {sTMP}, {sXB}")
                A(f"s_mul_i32 {sTMP2}, {sT}, {64*9216}")
                A(f"s_add_u32 {sTMP2}, {sTMP2}, {sW1B}")
                if t < 8:
                    A(f"s_add_u32 {sT}, {sT}, 1")
                    A(f"s_cmp_eq_u32 {sT}, 9")
                    A(f"s_cselect_b32 {sT}, 0, {sT}")
            def xp(i, first=False):
                def f():
                    if first: hdr()
                    A(f"s_add_u32 m0, {sLW}, {X[t] + i*4096}")
                    if i: A(f"s_add_u32 s3, {sTMP}, {i*36864}")
                    VM(f"S{t}", f"buffer_load_dwordx4 {vXD}, {SRD_X}, {'s3' if i else sTMP} offen lds")
                return f
            def wp(gk, e):
                def f():
                    if ty == 1:
                        A(f"s_add_u32 m0, {sLW}, {W[t] + gk*8192 + e*4096}")
                        o = (32*gk+4*e)*9216
                    else:
                        A(f"s_add_u32 m0, {sLW}, {W[t] + gk*4096}")
                        o = 32*gk*9216
                    if o: A(f"s_add_u32 s3, {sTMP2}, {o}")
                    VM(f"S{t}", f"buffer_load_dwordx4 {vW1D}, {SRD_W1}, {'s3' if o else sTMP2} offen lds")
                return f
            if ty == 1:
                fs = [xp(0, True), wp(0,0)] + ([xp(2)] if half == 0 else []) + [wp(0,1), xp(1), wp(1,0), wp(1,1)]
            else:
                fs = [xp(0, True), wp(0,0), xp(1), xp(2), wp(1,0), xp(3)]
            return [(f"S{t}", XFR[t], f) for f in fs]
        def w2_ops(t):
            def wp(gk, hf, first):
                def f():
                    if first:
                        A(f"s_mul_i32 {sTMP2}, s{16+t-9}, {64*1152}")
                        A(f"s_add_u32 {sTMP2}, {sTMP2}, {sW2B}")
                    if ty == 1:
                        A(f"s_add_u32 m0, {sLW}, {W[t] + gk*8192 + hf*4096}")
                        o = (32*gk+16*hf)*1152
                    else:
                        A(f"s_add_u32 m0, {sLW}, {W[t] + gk*4096}")
                        o = 32*gk*1152
                    if o: A(f"s_add_u32 s3, {sTMP2}, {o}")
                    VM(f"W{t}", f"buffer_load_dwordx4 {vW2D}, {SRD_W2}, {'s3' if o else sTMP2} offen lds")
                return f
            if ty == 1: fs = [wp(0,0,True), wp(0,1,False), wp(1,0,False), wp(1,1,False)]
            else: fs = [wp(0,0,True), wp(1,0,False)]
            return [(f"W{t}", WFR[t], f) for f in fs]
        def gate(t):
            u = t - 9 - own
            bits = 3 << (2*u)
            lb = f"{tg}_{t}"
            A(f"s_and_b32 s3, s66, {bits}")
            A(f"s_cbranch_scc1 L_hp{lb}")
            LB(f"L_hg{lb}")
            R_ = [f"L_hp{lb}:", "s_add_u32 s69, s69, 1", f"s_cmp_gt_u32 s69, {spinmax}", f"s_cbranch_scc1 L_hg{lb}",
                  f"s_and_b32 s3, s69, {kfall-1}", f"s_cbranch_scc1 L_hl{lb}",
                  "s_and_b32 s3, s66, 0xf0000", f"s_cbranch_scc1 L_hl{lb}",
                  "buffer_wbl2 sc1", "s_waitcnt vmcnt(0)",
                  "s_mov_b64 exec, 0xf0000",
                  f"buffer_store_dword v{T+9}, {vFA}, {SRD_WS}, s29 offen sc1",
                  "s_mov_b64 exec, -1", "s_mov_b32 s25, 1",
                  f"L_hl{lb}:",
                  f"buffer_load_dword {vF}, {vFA}, {SRD_WS}, s28 offen sc1",
                  "s_cmp_eq_u32 s25, 0", f"s_cbranch_scc1 L_hf{lb}",
                  f"buffer_load_dword {vG}, {vFA}, {SRD_WS}, s29 offen sc1",
                  f"L_hf{lb}:", "s_waitcnt vmcnt(0)",
                  f"v_cmp_ne_u32 vcc, s67, {vF}", f"v_cmp_ne_u32 s[26:27], v{T+9}, {vG}",
                  "s_nop 2", "s_or_b32 s26, s26, 0xf0000", "s_and_b32 s26, vcc_lo, s26", "s_and_b32 s66, s66, s26",
                  f"s_and_b32 s3, s66, {bits}", f"s_cbranch_scc0 L_hg{lb}"]
            if hsleep: R_.append(f"s_sleep {hsleep}")
            R_.append(f"s_branch L_hp{lb}")
            tail.extend([x if x.endswith(":") else "    " + x for x in R_])
        def hdma(t, f):
            sa = f"s{92+t-9}"
            a = vH2 if (ty == 1 and half == 0 and f == 2) else vHF(f)
            return (f"s_add_u32 m0, s31, {X[t] + f*2048}", f"buffer_load_dwordx4 {a}, {SRD_WS}, {sa} offen sc1 lds")
        def h_ops(t):
            def op(f):
                def fn():
                    if f == 0: gate(t)
                    m, ld = hdma(t, f)
                    A(m); VM(f"H{t}", ld)
                return fn
            return [(f"H{t}", max(9, XFR[t]), op(f)) for f in range(nfr)]
        def aux(label, fn): return (label, -1, fn)
        def setup2():
            SRD(40, 22, 5308416)
            SRD(44, 30, 0x10000000)
            SRD(60, 28, 256)
            setup3()
        def nonce_load():
            A(f"s_lshl_b32 s3, {sW}, 12")
            VM("nonce", f"buffer_load_dword v{T+9}, off, {SRD_DBG}, s3 sc1")
        def setup3():
            SRD(48, 26, 589824)
            SRD(56, 24, 1152)
            A(f"v_lshlrev_b32 {vL16}, 4, {vL}")
            if ty == 1:
                A(f"v_mul_u32_u24 v{T+7}, 1152, v{T+1}")
                A(f"v_add_u32 {vW2D}, v{T+4}, v{T+7}")
                A(f"s_mul_i32 {sW2B}, {sJ}, 576")
                A(f"s_lshl_b32 s3, {sW}, 2")
                A(f"s_add_u32 {sW2B}, {sW2B}, s3")
                A(f"s_mul_i32 {sW2B}, {sW2B}, 1152")
                A(f"s_lshl_b32 s3, {sC}, 8")
                A(f"s_add_u32 {sW2B}, {sW2B}, s3")
                if half == 0:
                    A(f"v_lshlrev_b32 v{T+8}, 3, v{T+1}")
                    A(f"s_lshl_b32 s4, {sJ}, 5")
                else:
                    A(f"v_and_b32 v{T+8}, 1, v{T+1}")
                    A(f"v_lshlrev_b32 v{T+8}, 3, v{T+8}")
                    A(f"v_and_b32 v{T+10}, 32, {vL}")
                    A(f"v_add_u32 v{T+8}, v{T+8}, v{T+10}")
                    A(f"s_lshr_b32 s4, {sJ}, 1")
                    A(f"s_lshl_b32 s4, s4, 6")
                    A(f"s_and_b32 s66, {sJ}, 1")
                    A(f"s_lshl_b32 s66, s66, 4")
                    A(f"s_add_u32 s4, s4, s66")
                A(f"s_add_u32 s30, s3, s4")
                A(f"s_and_b32 s66, {sP}, {1 if sw else 0}")
                A(f"s_lshl_b32 s67, {sC}, 1")
                A(f"s_add_u32 s16, s67, s66")
                A(f"s_xor_b32 s17, s16, 1")
                A(f"s_mul_i32 s3, {sP}, {prot}")
                A(f"s_lshr_b32 s3, s3, 1") if sw else None
                A(f"s_mul_i32 s4, s3, 86")
                A(f"s_lshr_b32 s4, s4, 8")
                A(f"s_mul_i32 s4, s4, 3")
                A(f"s_sub_u32 s3, s3, s4")
                pos = 18
                for k in range(4):
                    if k == upos:
                        A(f"s_mov_b32 s{pos}, 8"); pos += 1
                    if k == 3: break
                    A(f"s_add_u32 s4, s3, 1")
                    A(f"s_lshl_b32 s4, s4, 1")
                    A(f"s_xor_b32 s{pos}, s16, s4")
                    A(f"s_xor_b32 s{pos+1}, s{pos}, 1")
                    pos += 2
                    if k < 2:
                        A(f"s_add_u32 s3, s3, 1")
                        A(f"s_cmp_eq_u32 s3, 3")
                        A(f"s_cselect_b32 s3, 0, s3")
                assert pos == 25
                A(f"s_mul_i32 {sHB}, {sP}, 5")
                if half == 1:
                    A(f"s_cmp_eq_u32 {sP}, 6")
                    A(f"s_cselect_b32 s3, 0, 3")
                    A(f"s_add_u32 {sHB}, {sHB}, s3")
                else:
                    A(f"s_cmp_eq_u32 {sP}, 6")
                    A(f"s_cselect_b32 s3, 1, 2")
                    A(f"s_lshl_b32 s3, s3, 10")
                    A(f"v_add_u32 {vH2}, s3, {vL16}")
                fm = 0 if half == 0 else 3
                A(f"s_and_b32 s3, {sW}, 1")
                A(f"s_lshl_b32 s4, s3, 10")
                A(f"s_add_u32 s4, s4, {fm*2048}")
            else:
                A(f"v_add_u32 {vW2D}, v{T+4}, v{T+5}")
                A(f"s_mul_i32 {sW2B}, {sJ}, 576")
                A(f"s_lshl_b32 s3, {sW}, 3")
                A(f"s_add_u32 {sW2B}, {sW2B}, s3")
                A(f"s_mul_i32 {sW2B}, {sW2B}, 1152")
                A(f"s_add_u32 {sW2B}, {sW2B}, 1024")
                A(f"v_lshlrev_b32 v{T+8}, 3, v{T+1}")
                A(f"s_and_b32 s4, {sJ}, 3")
                A(f"s_lshl_b32 s4, s4, 5")
                A(f"s_add_u32 s30, s4, 1024")
                A(f"s_mov_b32 s16, 8")
                A(f"s_lshl_b32 s3, {sC}, 1")
                for k in range(8):
                    A(f"s_add_u32 s4, s3, {k}")
                    A(f"s_and_b32 s{17+k}, s4, 7")
                A(f"s_lshl_b32 {sHB}, {sC}, 3")
                A(f"s_lshr_b32 s4, {sW}, 1")
                A(f"s_lshl_b32 s3, s4, 2")
                A(f"s_add_u32 {sHB}, {sHB}, s3")
                A(f"s_and_b32 s3, {sW}, 1")
                A(f"s_lshl_b32 s4, s4, 13")
                A(f"s_lshl_b32 s66, s3, 10")
                A(f"s_add_u32 s4, s4, s66")
            A(f"s_mov_b32 s31, s4")
            for f in range(1, nfr): A(f"v_add_u32 {vHF(f)}, {f*1024}, {vL16}")
            if ty == 1:
                A(f"s_lshl_b32 s25, {sP}, 4")
                A(f"s_lshl_b32 s4, {sC}, 1")
                A(f"s_add_u32 s4, s4, s25")
                A(f"s_lshl_b32 s27, s3, 3")
                A(f"s_add_u32 s25, s25, s27")
                A(f"s_mov_b32 s26, s25")
                A(f"v_and_b32 {vFA}, 1, {vL}")
                A(f"v_bfe_u32 {vF}, {vL}, 1, 1")
                A(f"v_lshl_add_u32 {vFA}, {vFA}, 3, {vF}")
            else:
                A(f"s_mul_i32 s25, {sHB}, 52")
                A(f"s_lshr_b32 s25, s25, 8")
                A(f"s_add_u32 s26, {sHB}, 3")
                A(f"s_mul_i32 s26, s26, 52")
                A(f"s_lshr_b32 s26, s26, 8")
                for m_ in range(32): assert (m_*52) >> 8 == m_ // 5
                A(f"s_lshl_b32 s25, s25, 4")
                A(f"s_lshl_b32 s26, s26, 4")
                A(f"s_lshl_b32 s27, s3, 3")
                A(f"s_add_u32 s25, s25, s27")
                A(f"s_add_u32 s26, s26, s27")
                A(f"s_lshl_b32 s4, {sC}, 2")
                A(f"s_add_u32 s4, s4, 112")
                A(f"v_and_b32 {vFA}, 3, {vL}")
            A(f"v_add_u32 {vFA}, s4, {vFA}")
            for t in range(9+own, 18):
                u = t - 9 - own
                if ty == 1 and u == 2*upos:
                    for e in range(2):
                        if e == 0: A(f"s_lshr_b32 s4, {sHB}, 2")
                        else:
                            A(f"s_add_u32 s4, {sHB}, {nfr-1}")
                            A(f"s_min_u32 s4, s4, 31")
                            A(f"s_lshr_b32 s4, s4, 2")
                        A(f"s_lshl_b32 s4, s4, 1")
                        A(f"s_add_u32 s4, s4, s3")
                        A(f"s_add_u32 s4, s4, 112")
                        A(f"v_writelane_b32 {vFA}, s4, {2*u+e}")
                else:
                    A(f"s_add_u32 s4, s{16+t-9}, s25")
                    A(f"v_writelane_b32 {vFA}, s4, {2*u}")
                    if ty == 2: A(f"s_add_u32 s4, s{16+t-9}, s26")
                    A(f"v_writelane_b32 {vFA}, s4, {2*u+1}")
            A(f"v_lshlrev_b32 {vFA}, 2, {vFA}")
            A(f"s_mul_i32 s28, {sJ}, {HJ}")
            A(f"s_add_u32 s28, s28, {HB + HJ - 16384}")
            A(f"s_add_u32 s29, s28, {GF}")
            A(f"s_and_b32 s4, s{16+own}, 6")
            A(f"s_add_u32 s25, s25, s4")
            A(f"s_add_u32 s26, s26, s4")
            A(f"s_lshl_b32 s25, s25, 2")
            A(f"s_lshl_b32 s26, s26, 2")
            A(f"s_add_u32 s52, s25, s28")
            A(f"s_add_u32 s53, s26, s28")
            A(f"s_mov_b32 s25, 0")
            A(f"s_mov_b32 s66, -1")
            A(f"v_mov_b32 {vG}, 0")
            A(f"s_lshl_b32 s3, s3, 5")
            A(f"s_add_u32 {sHB}, {sHB}, s3")
            A(f"s_lshl_b32 {sHB}, {sHB}, 10")
            A(f"s_mul_i32 s3, {sJ}, {HJ}")
            A(f"s_add_u32 {sHB}, {sHB}, s3")
            A(f"s_add_u32 {sHB}, {sHB}, {HB}")
            for t in range(9+own, 18):
                A(f"s_lshl_b32 s3, s{16+t-9}, 16")
                A(f"s_add_u32 s{92+t-9}, s3, {sHB}")
            VM("bias", f"buffer_load_dwordx2 {v2(T+14)}, v{T+8}, {SRD_B2}, s30 offen")
            A(f"v_mov_b32 v{T+10}, {MBX}")
            A("s_getreg_b32 s67, hwreg(HW_REG_XCC_ID, 0, 4)")
            A("s_lshl_b32 s67, s67, 28")
            A("s_mov_b32 s69, 0")
            if tlb and half == 0:
                A(f"v_and_b32 v{T+11}, 1, {vL}")
                A(f"v_mul_u32_u24 v{T+12}, {HJ-128}, v{T+11}")
                A(f"v_mul_u32_u24 v{T+13}, {163840-128}, v{T+11}")
                A(f"s_mul_i32 s3, {sJ}, {HJ}")
                A(f"s_add_u32 s3, s3, {HB}")
                A(f"v_add_u32 v{T+12}, s3, v{T+12}")
                A(f"s_mul_i32 s3, {sI}, 163840")
                A(f"s_add_u32 s3, s3, {PB}")
                A(f"v_add_u32 v{T+13}, s3, v{T+13}")
                A(f"v_cmp_gt_u32 vcc, 2, {vL}")
                A(f"s_lshl_b32 s3, {sW}, 29")
                A(f"v_cndmask_b32 v{T+12}, v{T+13}, v{T+12}, vcc")
                A("s_mov_b64 exec, 15")
                VM("tlb", f"buffer_load_dword v{T+13}, v{T+12}, {SRD_WS}, s3 offen sc1")
                A(f"v_mul_u32_u24 v{T+12}, {575*1152}, v{T+11}")
                A(f"s_mul_i32 s3, {sJ}, {576*1152}")
                A(f"s_xor_b32 s4, {sW}, 1")
                A(f"s_lshl_b32 s4, s4, 29")
                A(f"s_add_u32 s3, s3, s4")
                A("s_mov_b64 exec, 3")
                VM("tlb", f"buffer_load_dword v{T+13}, v{T+12}, {SRD_W2}, s3 offen")
                A("s_mov_b64 exec, -1")
            if ftouch and (half == 1 or ty == 2):
                A(f"v_lshlrev_b32 v{T+12}, 6, {vL}")
                A(f"s_lshl_b32 s3, {sI}, 8")
                A(f"s_add_u32 s3, s3, s28")
                A(f"s_xor_b32 s4, {sW}, 3")
                A(f"s_lshl_b32 s4, s4, 29")
                A(f"s_add_u32 s3, s3, s4")
                A("s_mov_b64 exec, 15")
                VM("tlb", f"buffer_load_dword v{T+13}, v{T+12}, {SRD_WS}, s3 offen")
                A("s_mov_b64 exec, -1")
        def nonce_get():
            WVM("nonce")
            A(f"s_cmp_lg_u32 {sW}, 0")
            A(f"s_cbranch_scc1 L_nsk{tg}")
            A(f"v_readfirstlane_b32 s68, v{T+9}")
            A(f"s_cmp_eq_u32 s68, 0")
            A(f"s_cbranch_scc1 L_nr{tg}")
            LB(f"L_nok{tg}")
            tail.extend([f"L_nr{tg}:", "    s_add_u32 s69, s69, 1", f"    s_cmp_gt_u32 s69, {spinmax}", f"    s_cbranch_scc1 L_nok{tg}",
                         f"    buffer_load_dword v{T+9}, off, {SRD_DBG}, 0 sc1", "    s_waitcnt vmcnt(0)",
                         f"    v_readfirstlane_b32 s68, v{T+9}", "    s_cmp_eq_u32 s68, 0", f"    s_cbranch_scc1 L_nr{tg}", f"    s_branch L_nok{tg}"])
            A("s_mov_b32 s69, 0")
            DS("mbx", f"ds_write_b32 v{T+10}, v{T+9}")
            LB(f"L_nsk{tg}")
        for t in range(9):
            Q += stage_ops(t)
            if t == npos[0] and half == 0: Q.append(("aux", -1, nonce_load))
        Q.insert(N0 or N, ("aux", -1, setup2))
        rem = list(range(9+own, 18))
        nob = nobar1 if ty == 1 else nobar2
        bars = [t for t in range(18) if t not in nob]
        def refresh(): VM("R1", f"buffer_load_dword v{HS+8}, {vFA}, {SRD_WS}, s28 offen sc1")
        def check():
            WVM("R1")
            A(f"v_cmp_ne_u32 vcc, s67, v{HS+8}")
            A(f"s_and_b32 s66, s66, vcc_lo")
        def spoll():
            if hdelay[ty-1]: A(f"s_sleep {hdelay[ty-1]}")
            STAMPH(2)
            LB(f"L_sp{tg}")
            A(f"s_load_dwordx2 s[26:27], s[44:45], s52")
            if ty == 2: A(f"s_load_dwordx2 s[56:57], s[44:45], s53")
            A(f"s_add_u32 s52, s52, 512")
            if ty == 2: A(f"s_add_u32 s53, s53, 512")
            A(f"s_add_u32 s68, s68, 1")
            A(f"s_cmp_gt_u32 s68, {nsp}")
            A("s_waitcnt lgkmcnt(0)")
            A(f"s_cbranch_scc1 L_sq{tg}")
            A(f"s_cmp_lg_u64 s[26:27], s[54:55]")
            A(f"s_cbranch_scc1 L_sp{tg}")
            if ty == 2:
                A(f"s_cmp_lg_u64 s[56:57], s[54:55]")
                A(f"s_cbranch_scc1 L_sp{tg}")
            A(f"s_andn2_b32 s66, s66, 15")
            LB(f"L_sq{tg}")
            STAMPH(3)
        for t in range(9, 15 if ty == 1 else 18): Q += w2_ops(t)
        toks = (order1 if ty == 1 else order2).split()
        for k, x in enumerate(toks):
            if x == 'P': Q.append(("aux", 9, spoll))
            elif x == 'R1': Q.append(("R1", 9, refresh))
            elif x == 'C1': Q.append(("aux", cpos[ty-1], check))
            else: Q += (w2_ops if x[0] == 'W' else h_ops)(int(x[1:]))
        def need(t): return [f"S{t}"] if t < 9 else [f"W{t}", f"H{t}"]
        def pump(b, nd, upto=None):
            while Q:
                lab, fb, fn = Q[0]
                if fb >= b: break
                if not nd and upto and not any(q[0] == upto for q in Q): break
                Nw = N0 if (N0 and b == 0) else (N2 if (N2 and b >= 9) else N)
                if len(vm) >= Nw and lab != "aux":
                    pending_needed = any(x in nd for x in vm) or any(q[0] in nd for q in Q)
                    if not pending_needed:
                        if upto is None or not any(q[0] == upto for q in Q): break
                    pend.append(Nw - 1)
                Q.pop(0); fn()
                assert not pend
        assert kfall & (kfall-1) == 0
        prevb = -1
        for bi, b in enumerate(bars):
            nxt = bars[bi+1] if bi+1 < len(bars) else 18
            av = avail(ty, b, nxt)
            nd = [x for t in av for x in need(t)]
            if b <= 9 or any(x in nd for x in vm) or any(q[0] in nd for q in Q): pump(b, nd)
            assert not any(q[0] in nd for q in Q), (ty, half, b)
            if b == 9:
                A(f"ds_read_b32 v{T+9}, v{T+10}")
                A("s_waitcnt lgkmcnt(0)"); lg.clear()
                A(f"v_readfirstlane_b32 s3, v{T+9}")
                A(f"s_xor_b32 s67, s67, s3")
                A(f"s_mov_b32 s68, 0")
                A(f"s_mov_b32 s54, s67")
                A(f"s_mov_b32 s55, s67")
            if (post1 if ty == 1 else post2).get(b): pump(b, [], upto=(post1 if ty == 1 else post2).get(b))
            for x in nd: WVM(x)
            WLG0()
            STAMPB(b)
            if b == 9+own: STAMPH(4)
            A("s_barrier")
            if b == 9: STAMPH(0)
            if b == 10: STAMPH(1)
            if b == 0: STAMP(1)
            if b == 4: STAMP(2)
            if b == 8: STAMP(3)
            if b == 9: STAMP(4)
            if b == 11: STAMP(5)
            if b == 13: STAMP(6)
            if nxt == 18: STAMP(7)
            if lprio and b == lppos: A(f"s_setprio {lprio}")
            if b == wbpos and ty == 1 and half == 1:
                A(f"s_lshl_b32 s3, {sI}, 2")
                A(f"s_add_u32 s3, s3, {sW}")
                A(f"s_cmp_lg_u32 s3, {wbi*4+3}")
                A("s_cbranch_scc1 L_nowb")
                if wbdel: A(f"s_sleep {wbdel}")
                A("buffer_wbl2 sc1")
                LB("L_nowb")
            if b == npos[1] and half == 0:
                assert not any(q[2] is nonce_load for q in Q)
                nonce_get()
            prevb = b
        assert not Q
        for o in masks(T+9, PM, HS): A(o)
        S = 24
        SEL = 40
        PX = 48
        def P(k): return HS + 4*k
        A(f"v_and_b32 v{T+4}, 15, {vL}")
        A(f"v_lshrrev_b32 v{T+5}, 2, v{T+4}")
        A(f"v_xor_b32 v{T+5}, v{T+5}, v{T+1}")
        if ty == 1 and half == 1: A(f"v_and_b32 v{T+5}, 1, v{T+5}")
        A(f"v_and_b32 v{T+6}, 1, {vL}")
        A(f"v_lshlrev_b32 v{T+6}, 4, v{T+6}")
        A(f"v_mov_b32 v{T+7}, 0x3f80")
        A(f"v_lshlrev_b32 v{T+6}, v{T+6}, v{T+7}")
        A(f"v_bfe_u32 v{T+7}, {vL}, 1, 1")
        A(f"v_lshl_or_b32 v{T+5}, v{T+5}, 1, v{T+7}")
        for h in range(2):
            A(f"v_lshlrev_b32 v{S+2*h}, 16, v{T+14+h}")
            A(f"v_and_b32 v{S+2*h+1}, 0xffff0000, v{T+14+h}")
        A(f"v_mul_u32_u24 v{T+4}, 1152, v{T+4}")
        A(f"v_add_u32 v{T+4}, v{T+4}, v{T+8}")
        for k in range(2):
            A(f"v_cmp_eq_u32 vcc, {k}, v{T+5}")
            A(f"v_mov_b32 v{SEL+k}, 0")
            A(f"v_mov_b32 v{SEL+4+k}, 0")
            A(f"v_cndmask_b32 v{SEL+2+k}, 0, v{T+6}, vcc")
        for k in range(4):
            A(f"v_xor_b32 v{PX+k}, 0x10001, v{PM+k}")
            A(f"v_mov_b32 v{S+4+k}, v{S+k}")
        A(f"s_lshl_b32 s3, {sI}, 3")
        A(f"s_add_u32 s3, s3, {sJ}")
        A(f"s_mul_i32 s26, s3, 20480")
        A(f"s_add_u32 s26, s26, {PB}")
        if diag:
            A("s_lshl_b32 s101, s69, 8"); A("s_add_u32 s101, s101, s68")
        A("s_mov_b32 s69, 0")
        def poll(nsrc, ld, fin, tag):
            if half == 1: A(f"s_sleep {pdelay[2]}")
            else:
                A(f"s_sleep {pdelay[0]}")
                A(f"s_cmp_eq_u32 {sW}, 0")
                A(f"s_cbranch_scc1 L_poll{tag}")
                A(f"s_sleep {pdelay[1]-pdelay[0]}")
            LB(f"L_poll{tag}")
            for k in range(nsrc):
                A(f"s_bitcmp0_b32 s28, {k}")
                A(f"s_cbranch_scc1 L_pl{tag}{k}")
                A(ld(k))
                LB(f"L_pl{tag}{k}")
            A("s_waitcnt vmcnt(0)")
            for k in range(nsrc):
                A(f"s_bitcmp0_b32 s28, {k}")
                A(f"s_cbranch_scc1 L_pc{tag}{k}")
                for e in range(4): A(f"v_xor_b32 v{P(k)+e}, v{P(k)+e}, v{PX+e}")
                A(f"v_bitop3_b32 {vBAD}, v{P(k)}, v{P(k)+1}, v{P(k)+2} bitop3:0x80")
                A(f"v_bitop3_b32 {vBAD}, {vBAD}, v{P(k)+3}, s27 bitop3:0x80")
                A(f"v_cmp_ne_u32 vcc, s27, {vBAD}")
                A(f"s_cbranch_vccnz L_pc{tag}{k}")
                A(f"v_mfma_f32_16x16x32_bf16 {v4(S)}, {v4(SEL+2)}, {v4(P(k))}, {v4(S)}")
                A(f"v_mfma_f32_16x16x32_bf16 {v4(S+4)}, {v4(SEL)}, {v4(P(k))}, {v4(S+4)}")
                A(f"s_bitset0_b32 s28, {k}")
                LB(f"L_pc{tag}{k}")
            A("s_cmp_eq_u32 s28, 0")
            A(f"s_cbranch_scc1 L_pok{tag}")
            SPIN(f"L_pok{tag}")
            if psleep: A(f"s_sleep {psleep}")
            A(f"s_branch L_poll{tag}")
            LB(f"L_pok{tag}")
            STAMP(9)
            A("s_nop 7")
            fin()
            A("s_branch L_fin")
        A("s_mov_b32 s27, 0x10001")
        if half == 0:
            if ty == 2:
                A(f"s_cmp_ge_u32 {sW}, 2"); A(f"s_cselect_b32 s28, 0, 0x7f")
            else:
                A(f"s_lshl_b32 s3, {sW}, 3"); A(f"s_or_b32 s3, s3, {sP}")
                A(f"s_cmp_eq_u32 s3, 14"); A(f"s_cselect_b32 s28, 0, 0x7f")
            A(f"s_add_u32 s26, s26, {sLW}")
            for k in range(7):
                A(f"s_xor_b32 s3, {sJ}, {k+1}")
                A(f"s_mul_i32 s3, s3, 2560")
                A(f"s_add_u32 s{16+k}, s26, s3")
            A(f"s_lshl_b32 s3, {sW}, 11")
            A(f"s_add_u32 s3, s3, {HANDS[ty]}")
            A(f"v_add_u32 v6, s3, {vL16}")
            if ty == 1:
                A(f"s_mul_i32 s4, {sP}, 80")
            else:
                A(f"s_lshl_b32 s4, {sC}, 7")
                A(f"s_lshr_b32 s3, {sJ}, 2")
                A(f"s_lshl_b32 s3, s3, 6")
                A(f"s_add_u32 s4, s4, s3")
            A(f"s_lshl_b32 s3, {sW}, 5")
            A(f"s_add_u32 s4, s4, s3")
            A(f"s_mul_i32 s4, s4, 1152")
            A(f"s_add_u32 s30, s30, s4")
            A(f"s_add_u32 s31, s30, {16*1152}")
            A("s_barrier")
            STAMP(8)
            A("s_cmp_eq_u32 s28, 0")
            A("s_cbranch_scc1 L_fin")
            A(f"ds_read_b128 {v4(P(0))}, v6")
            A(f"ds_read_b128 {v4(P(1))}, v6 offset:1024")
            A("s_waitcnt lgkmcnt(0)")
            for k in range(2):
                for e in (0, 2): A(f"v_pk_add_f32 {v2(S+4*k+e)}, {v2(S+4*k+e)}, {v2(P(k)+e)}")
            def fin():
                for k in range(2):
                    A(f"v_cvt_pk_bf16_f32 v{T+10+2*k}, v{S+4*k}, v{S+4*k+1}")
                    A(f"v_cvt_pk_bf16_f32 v{T+11+2*k}, v{S+4*k+2}, v{S+4*k+3}")
                    A(f"buffer_store_dwordx2 {v2(T+10+2*k)}, v{T+4}, {SRD_OUT}, s{30+k} offen")
            poll(7, lambda k: f"buffer_load_dwordx4 {v4(P(k))}, {vL16}, {SRD_WS}, s{16+k} offen sc1", fin, tg)
        else:
            A(f"s_cmp_eq_u32 {sW}, 2"); A(f"s_cselect_b32 s28, 0xf, 0")
            A(f"s_cmp_eq_u32 {sP}, 6"); A(f"s_cselect_b32 s28, 0, s28")
            A(f"v_lshrrev_b32 v{T+5}, 5, {vL}")
            A(f"v_mul_u32_u24 v{T+5}, {2560-512}, v{T+5}")
            A(f"v_add_u32 v6, v{T+5}, {vL16}")
            for k in range(4): A(f"s_add_u32 s{16+k}, s26, {2048 + k*5120}")
            A(f"s_mul_i32 s4, {sP}, {80*1152}")
            A(f"s_add_u32 s30, s30, s4")
            A(f"s_add_u32 s30, s30, {64*1152}")
            A("s_barrier")
            STAMP(8)
            A("s_cmp_eq_u32 s28, 0")
            A("s_cbranch_scc1 L_fin")
            def fin():
                A("s_mov_b32 exec_lo, 0")
                for e in range(4): A(f"v_mov_b32 v{S+e}, v{S+4+e}")
                A("s_mov_b32 exec_lo, -1")
                A(f"v_cvt_pk_bf16_f32 v{T+10}, v{S}, v{S+1}")
                A(f"v_cvt_pk_bf16_f32 v{T+11}, v{S+2}, v{S+3}")
                A(f"buffer_store_dwordx2 {v2(T+10)}, v{T+4}, {SRD_OUT}, s30 offen")
            poll(4, lambda k: f"buffer_load_dwordx4 {v4(P(k))}, v6, {SRD_WS}, s{16+k} offen sc1", fin, tg)

    loader(1, 0)
    LB("L_ld1b")
    loader(1, 1)
    LB("L_ld2")
    A(f"v_bfe_u32 v{T+4}, {vL}, 1, 2")
    A(f"v_xor_b32 v{T+4}, v{T+4}, v{T+1}")
    A(f"v_lshl_add_u32 v{T+4}, v{T+4}, 1, v{T+6}")
    A(f"v_lshlrev_b32 v{T+4}, 4, v{T+4}")
    A(f"v_and_b32 v{T+7}, 3, v{T}")
    A(f"v_lshrrev_b32 v{T+8}, 5, {vL}")
    A(f"v_lshl_add_u32 v{T+7}, v{T+8}, 3, v{T+7}")
    A(f"v_mul_u32_u24 v{T+7}, 9216, v{T+7}")
    A(f"v_add_u32 {vW1D}, v{T+4}, v{T+7}")
    A(f"s_lshl_b32 {sXB}, {sC}, 4")
    A(f"s_add_u32 {sXB}, {sXB}, {sW}")
    A(f"s_mul_i32 {sXB}, {sXB}, {8*1152}")
    A(f"s_and_b32 s3, {sW}, 1")
    A(f"s_lshl_b32 s3, s3, 4")
    A(f"s_lshr_b32 {sW1B}, {sW}, 1")
    A(f"s_lshl_b32 {sW1B}, {sW1B}, 2")
    A(f"s_add_u32 {sW1B}, {sW1B}, s3")
    A(f"s_mul_i32 {sW1B}, {sW1B}, 9216")
    A(f"s_add_u32 {sW1B}, {sW1B}, s4")
    A(f"s_add_u32 {sW1B}, {sW1B}, 1024")
    A(f"s_mul_i32 {sT}, {sC}, {rot2[0]}")
    if rot2[1]: A(f"s_add_u32 {sT}, {sT}, {rot2[1]}")
    if rot2[0]*3 + rot2[1] >= 9: mod9(sT)
    A("s_waitcnt lgkmcnt(0)")
    A("s_mov_b64 s[32:33], s[16:17]")
    A("s_mov_b64 s[36:37], s[18:19]")
    loader(2, 0)

    LB("L_comp")
    A("s_memrealtime s[64:65]")
    A(f"s_cmp_eq_u32 {sP}, 6")
    A("s_cbranch_scc1 L_comp2")
    def compute(ty):
        vm.clear(); lg.clear()
        X, W, XFR, WFR = lds_map(ty)
        MT = 5 if ty == 1 else 4
        def vXA(wn, ks): return f"v{6+wn*2+ks}"
        def vWA(wn, jj): return f"v{48+wn*2+jj}"
        def vXL(wn): return f"v{54+wn}"
        vL16, vHS, vHS4, vHL = "v14", "v12", "v13", "v15"
        HM = 16; PM = 20; B1 = 24
        def AC(ph, mt, jj): return (172 if ph == 1 else 212) + (mt*2+jj)*4
        def XF(buf, mt): return 60 + buf*20 + mt*4
        def WF(buf, jj): return 140 + buf*8 + jj*4
        KEEP = 212; HU = 232
        sOWN, sNON = "s11", "s12"
        def hstore(mt, fl, o=None):
            if o is None: o = HU + 4*mt
            if ty == 2 or mt < 2: return f"buffer_store_dwordx4 {v4(o)}, {vL16}, {SRD_WS}, {sOWN} offen offset:{mt*1024} {fl}"
            if mt < 4: return f"buffer_store_dwordx4 {v4(o)}, {vHS}, {SRD_WS}, {sOWN} offen offset:{mt*1024} {fl}"
            return f"buffer_store_dwordx4 {v4(o)}, {vHS4}, {SRD_WS}, {sOWN} offen {fl}"
        if ty == 1: A(f"s_min_u32 {sP}, {sP}, 6")
        A(f"v_lshlrev_b32 {vL16}, 4, {vL}")
        A(f"v_and_b32 v{T+4}, 15, {vL}")
        A(f"v_lshrrev_b32 v{T+5}, 1, v{T+4}")
        A(f"v_xor_b32 v{T+5}, v{T+5}, v{T+1}")
        A(f"v_lshlrev_b32 v{T+4}, 7, v{T+4}")
        A(f"v_lshl_add_u32 {vXA(0,0)}, v{T+5}, 4, v{T+4}")
        A(f"v_lshrrev_b32 v{T+4}, 2, {vL}")
        A(f"v_and_b32 v{T+6}, 3, {vL}")
        A(f"v_lshlrev_b32 v{T+6}, 3, v{T+6}")
        if ty == 1:
            A(f"v_mov_b32 {vXL(0)}, {vL16}")
            A(f"v_and_b32 v{T+5}, 7, v{T+4}")
            A(f"v_lshlrev_b32 v{T+7}, 1, v1")
            A(f"v_xor_b32 v{T+5}, v{T+5}, v{T+7}")
            A(f"v_lshl_add_u32 v{T+7}, v{T+4}, 8, v{T+6}")
        else:
            A(f"s_lshr_b32 s3, {sW}, 1")
            A(f"s_lshl_b32 s3, s3, 13")
            A(f"v_add_u32 {vXA(0,0)}, s3, {vXA(0,0)}")
            A(f"v_add_u32 {vXL(0)}, s3, {vL16}")
            A(f"v_bfe_u32 v{T+5}, v{T+4}, 1, 2")
            A(f"v_and_b32 v{T+7}, 1, v1")
            A(f"v_lshlrev_b32 v{T+7}, 1, v{T+7}")
            A(f"v_xor_b32 v{T+5}, v{T+5}, v{T+7}")
            A(f"v_lshl_add_u32 v{T+7}, v{T+4}, 7, v{T+6}")
        A(f"v_lshl_add_u32 {vWA(0,0)}, v{T+5}, 5, v{T+7}")
        A(f"v_xor_b32 {vWA(0,1)}, 32, {vWA(0,0)}")
        A(f"v_xor_b32 {vXA(0,1)}, 64, {vXA(0,0)}")
        for wn in (1, 2):
            for k in range(2):
                A(f"v_add_u32 {vXA(wn,k)}, {wn*65536}, {vXA(0,k)}")
                A(f"v_add_u32 {vWA(wn,k)}, {wn*65536}, {vWA(0,k)}")
            A(f"v_add_u32 {vXL(wn)}, {wn*65536}, {vXL(0)}")
        A(f"v_lshlrev_b32 v{T+8}, 3, v{T+1}")
        A(f"s_mul_i32 s4, {sJ}, 1152")
        if ty == 1:
            A(f"s_lshl_b32 s3, {sC}, 8")
            A(f"s_add_u32 s4, s4, s3")
            A(f"s_lshl_b32 s3, {sW}, 6")
        else:
            A(f"s_add_u32 s4, s4, 1024")
            A(f"s_and_b32 s3, {sW}, 1")
            A(f"s_lshl_b32 s3, s3, 6")
        A(f"s_add_u32 s3, s3, s4")
        A("s_waitcnt lgkmcnt(0)")
        if ty == 1:
            A(f"s_or_b32 s4, s2, {sW}")
            A(f"s_cmp_lg_u32 s4, 0")
            A(f"s_cbranch_scc1 L_nonn")
            SRD(60, 28, 256)
            A(f"s_mul_i32 {sNON}, s64, 0x9E3779B1")
            A(f"s_lshr_b32 s4, {sNON}, 15")
            A(f"s_xor_b32 {sNON}, {sNON}, s4")
            A(f"s_mul_i32 {sNON}, {sNON}, 0x85EBCA6B")
            A(f"s_lshr_b32 s4, {sNON}, 13")
            A(f"s_xor_b32 {sNON}, {sNON}, s4")
            A(f"s_or_b32 {sNON}, {sNON}, 1")
            A(f"s_and_b32 {sNON}, {sNON}, 0xFFFFFEFF")
            A(f"v_mov_b32 v{T+9}, {sNON}")
            A("s_mov_b64 exec, 1")
            A(f"buffer_store_dword v{T+9}, off, {SRD_DBG}, 0 sc1")
            A("s_mov_b64 exec, -1")
            LB("L_nonn")
        SRD(52, 20, 9216)
        VM("bias", f"buffer_load_dwordx2 {v2(T+10)}, v{T+8}, {SRD_B1}, s3 offen")
        VM("bias", f"buffer_load_dwordx2 {v2(T+12)}, v{T+8}, {SRD_B1}, s3 offen offset:32")
        SRD(44, 30, 0x10000000)
        if ty == 1:
            A(f"s_lshl_b32 s3, {sC}, 2")
            A(f"s_add_u32 s3, s3, {sW}")
            A(f"s_lshl_b32 s3, s3, 5")
            A(f"s_mul_i32 s4, {sP}, 5")
            A(f"s_add_u32 s3, s3, s4")
            A(f"s_cmp_eq_u32 {sP}, 6")
            A(f"s_cselect_b32 s4, 0x7fff0000, 0")
            A(f"v_add_u32 {vHS}, s4, {vL16}")
            A(f"v_add_u32 {vHS4}, 4096, {vHS}")
            A(f"s_lshr_b32 s4, {sW}, 1")
            if sw:
                A(f"s_xor_b32 s4, s4, {sP}")
                A(f"s_and_b32 s4, s4, 1")
            A(f"s_mul_i32 s4, s4, {X[10]-X[9]}")
            A(f"s_add_u32 s4, s4, {X[9]}")
            A(f"s_and_b32 s10, {sW}, 1")
            A(f"s_lshl_b32 s10, s10, 10")
            A(f"s_add_u32 s4, s4, s10")
            A(f"v_add_u32 {vHL}, s4, {vL16}")
        else:
            A(f"s_and_b32 s10, {sW}, 1")
            A(f"s_add_u32 s3, s10, 16")
            A(f"s_lshl_b32 s3, s3, 5")
            A(f"s_lshl_b32 s4, {sC}, 3")
            A(f"s_add_u32 s3, s3, s4")
            A(f"s_lshr_b32 s4, {sW}, 1")
            A(f"s_lshl_b32 s4, s4, 2")
            A(f"s_add_u32 s3, s3, s4")
            A(f"s_lshl_b32 s10, s10, 10")
            A(f"s_add_u32 s10, s10, {X[9]}")
            A(f"v_add_u32 {vHL}, s10, {vXL(0)}")
        A(f"s_lshl_b32 s3, s3, 10")
        A(f"s_mul_i32 {sOWN}, {sJ}, {HJ}")
        A(f"s_add_u32 {sOWN}, {sOWN}, s3")
        A(f"s_add_u32 {sOWN}, {sOWN}, {HB}")
        A(f"s_lshl_b32 s3, {sI}, 3")
        A(f"s_lshl_b32 s4, {sW}, 1")
        A(f"s_add_u32 s3, s3, s4")
        A(f"s_lshl_b32 s3, s3, 3")
        A(f"s_add_u32 s3, s3, {sJ}")
        A(f"s_mul_i32 s16, s3, 2560")
        A(f"s_add_u32 s16, s16, {PB}")
        A(f"s_add_u32 s17, s16, 20480")
        A(f"s_xor_b32 s18, s4, {sJ}")
        A(f"s_mov_b32 s19, 0x07060302")
        A(f"s_mov_b32 s20, 0x10001")
        if ty == 1:
            A(f"v_lshrrev_b32 v{T+5}, 5, {vL}")
            A(f"v_mul_u32_u24 v{T+5}, {20480-512}, v{T+5}")
            A(f"v_add_u32 v3, v{T+5}, {vHS}")
        A(f"v_add_u32 v4, {HANDS[ty]}, {vL16}")
        A(f"v_mov_b32 v5, {MBX}")
        A(f"v_lshlrev_b32 v{HM+1}, 9, {vL}")
        A("s_getreg_b32 s21, hwreg(HW_REG_XCC_ID, 0, 4)")
        A("s_lshl_b32 s21, s21, 28")
        if ty == 1:
            A(f"s_lshl_b32 s3, {sP}, 4")
            A(f"s_lshl_b32 s4, {sC}, 1")
            A(f"s_add_u32 s3, s3, s4")
            A(f"s_lshr_b32 s4, {sW}, 1")
            A(f"s_add_u32 s3, s3, s4")
            A(f"s_and_b32 s4, {sW}, 1")
            A(f"s_lshl_b32 s4, s4, 3")
            A(f"s_add_u32 s3, s3, s4")
        else:
            A(f"s_lshl_b32 s3, {sC}, 2")
            A(f"s_add_u32 s3, s3, 112")
            A(f"s_add_u32 s3, s3, {sW}")
        A(f"s_lshl_b32 s3, s3, 2")
        A(f"s_mul_i32 s22, {sJ}, {HJ}")
        A(f"s_add_u32 s22, s22, s3")
        A(f"s_add_u32 s22, s22, {HB + HJ - 16384}")
        WVM("bias")
        for k in range(2):
            for h in range(2):
                src = T+10+2*k+h
                A(f"v_lshlrev_b32 v{B1+4*k+2*h}, 16, v{src}")
                A(f"v_and_b32 v{B1+4*k+2*h+1}, 0xffff0000, v{src}")
        def read_ops(n):
            t, ks = divmod(n, 2); bf = n % 4
            ops = []
            for jj in range(2):
                for hf in range(2):
                    off = W[t] + (ks*8192 + hf*4096 if ty == 1 else ks*4096 + hf*2048)
                    ops.append((f"r{n}_0", f"ds_read_b64_tr_b16 {v2(WF(bf,jj)+2*hf)}, {vWA(off>>16,jj)} offset:{off & 0xffff}"))
            for mt in range(MT):
                if t < 9:
                    off = X[t] + mt*2048; a = vXA(off >> 16, ks)
                else:
                    off = X[t] + mt*2048 + ks*1024; a = vXL(off >> 16)
                ops.append((f"r{n}_{mt}", f"ds_read_b128 {v4(XF(bf,mt))}, {a} offset:{off & 0xffff}"))
            return ops
        def mf(n, mt, jj):
            ph = 1 if n < 18 else 2; bf = n % 4
            c = v4(B1+4*jj) if n == 0 else ("0" if n == 18 else v4(AC(ph,mt,jj)))
            A(f"v_mfma_f32_16x16x32_bf16 {v4(AC(ph,mt,jj))}, {v4(WF(bf,jj))}, {v4(XF(bf,mt))}, {c}")
        extra = []
        def emit(op):
            if isinstance(op, tuple):
                if op[0] == 'vm': VM("hst", op[1])
                elif op[0] == 'wait': WLG(op[1])
                elif op[0] == 'f1':
                    STAMPH(2)
                    A("s_waitcnt vmcnt(0)"); vm.clear()
                    STAMPH(3)
                    A(f"s_mov_b64 exec, {(1 << nsp) - 1}")
                    A(f"buffer_store_dword v{HM}, v{HM+1}, {SRD_WS}, s22 offen")
                    A("s_mov_b64 exec, -1")
                else: DS("hw", op[1])
            else: A(op)
        rq = []
        done = [-1]
        def rd_ok(): return rq and rq[0][0] - 4 <= done[0]
        def fill(k):
            n = 0
            while n < k and rd_ok(): DS(*rq.pop(0)[1]); n += 1
            while n < k and extra: emit(extra.pop(0)); n += 1
        def flush_reads(upto):
            while rq and rq[0][0] <= upto:
                assert rd_ok(); DS(*rq.pop(0)[1])
        def group(n):
            flush_reads(n)
            for mt in range(MT):
                WLG(f"r{n}_{mt}")
                for jj in range(2):
                    mf(n, mt, jj); fill(2)
                    if (n-18)*2*MT + mt*2 + jj == fpos[ty-1]: emit(('f1',))
            done[0] = n
        def epi_ops(mt):
            ops = []
            t = T + 8*(mt % 2)
            for jj in range(2):
                a = AC(1, mt, jj)
                for k in range(4): ops.append(f"v_max_f32 v{t+4*jj+k}, 0, v{a+k}")
                for k in (0, 2): ops.append(f"v_pk_mul_f32 {v2(t+4*jj+k)}, {v2(t+4*jj+k)}, {v2(t+4*jj+k)}")
            h = HU + 4*mt
            for k in range(4): ops.append(f"v_cvt_pk_bf16_f32 v{h+k}, v{t+2*k}, v{t+2*k+1}")
            if diag2 == 3 and mt in (2, 3): ops.append(f"s_memtime s[{72+2*(3+3*(mt-2))}:{73+2*(3+3*(mt-2))}]")
            ops.append(('vm', hstore(mt, hfl)))
            if diag2 == 3 and mt in (2, 3): ops.append(f"s_memtime s[{72+2*(4+3*(mt-2))}:{73+2*(4+3*(mt-2))}]")
            ops.append(('ds', f"ds_write_b128 {vHL}, {v4(h)} offset:{mt*2048}"))
            if diag2 == 3 and mt in (2, 3): ops.append(f"s_memtime s[{72+2*(5+3*(mt-2))}:{73+2*(5+3*(mt-2))}]")
            return ops
        nob = nobar1 if ty == 1 else nobar2
        dep = dep1 if ty == 1 else dep2
        bars = [t for t in range(18) if t not in nob]
        g = 0
        for bi, b in enumerate(bars):
            nxt = bars[bi+1] if bi+1 < len(bars) else 18
            d = 0 if b in (0, 9) else dep.get(b, 1)
            if b == 9:
                while g < 16: group(g); g += 1
                flush_reads(17)
                STAMPE(1)
                assert not extra
                q = []
                cnt = 0
                for mt in range(MT):
                    for n in (16, 17):
                        WLG(f"r{n}_{mt}")
                        for jj in range(2):
                            mf(n, mt, jj); cnt += 1
                            if cnt % 4 == 3 and mt >= 1: q += epi_ops(mt-1)
                            for _ in range(eslots):
                                if q: emit(q.pop(0))
                STAMPE(2)
                while q: emit(q.pop(0))
                for op in epi_ops(MT-1): emit(op)
                done[0] = 17; g = 18
                STAMPH(4)
                STAMP(4)
            while g < 2*b - d: group(g); g += 1
            flush_reads(99)
            WLG0()
            if b == 9 and fpos[ty-1] < 0: emit(('f1',))
            STAMPB(b)
            A("s_barrier")
            if b == 0: STAMP(1)
            if b == 4: STAMP(2)
            if b == 8: STAMP(3); STAMPE(0)
            if b == 9: STAMPH(0)
            if b == 10: STAMPH(1)
            if b == 11: STAMP(5)
            if b == 13: STAMP(6)
            if nxt < 18:
                for t_ in avail(ty, b, nxt):
                    for n in (2*t_, 2*t_+1): rq.extend((n, o) for o in read_ops(n))
            if b == mpos:
                DS("non", f"ds_read_b32 v{T+9}, v5")
                extra.append(('wait', "non"))
                extra.append(f"v_xor_b32 v{HM}, s21, v{T+9}")
                extra.extend(masks(T+9, PM, T+10))
        n0 = 2*ts[ty-1]; NK = 36 - n0
        assert g == n0 - 1 and NK <= 8 and not rq and not extra
        busy = (n0-1) % 4
        wt = [172+8*k for k in range(5)] + [WF(bf,0) for bf in range(4) if bf != busy]
        xr = [XF(bf,m) for bf in range(4) if bf != busy for m in range(5)]
        segs = [(0,1),(2,3)] + ([(4,)] if MT == 5 else [])
        seq = [(n, mt) for sg in segs for n in range(n0, 36) for mt in sg]
        tr = []
        for k, (n, mt) in enumerate(seq):
            t, ks = divmod(n, 2)
            if mt == 0:
                for jj in range(2):
                    for hf in range(2):
                        off = W[t] + (ks*8192 + hf*4096 if ty == 1 else ks*4096 + hf*2048)
                        tr.append((-1, f"x{k}", f"ds_read_b64_tr_b16 {v2(wt[n-n0]+4*jj+2*hf)}, {vWA(off>>16,jj)} offset:{off & 0xffff}"))
            off = X[t] + mt*2048 + ks*1024
            tr.append((k - len(xr), f"x{k}", f"ds_read_b128 {v4(xr[k % len(xr)])}, {vXL(off >> 16)} offset:{off & 0xffff}"))
        used = [-1]
        def tfill(kk):
            c = 0
            while c < kk and tr and tr[0][0] <= used[0] and len(lg) < tlg:
                _, lab, tx = tr.pop(0); DS(lab, tx); c += 1
            while c < kk and extra:
                for o in extra.pop(0): (LB(o[:-1]) if o.endswith(":") else A(o))
                c += 1
        PKS = [24, 28, 32, 36, 40]
        def pub_ops(si):
            ops = []
            if si < 2:
                for jj in range(2):
                    o = PKS[2*si+jj]
                    for n_, mt in enumerate(segs[si]):
                        a = AC(2, mt, jj)
                        for e in range(2): ops.append([f"v_perm_b32 v{o+2*n_+e}, v{a+2*e+1}, v{a+2*e}, s19"])
                    for e in range(4): ops.append([f"v_bfi_b32 v{o+e}, s20, v{PM+e}, v{o+e}"])
                    av = vL16 if (si == 0 or ty == 2) else vHS
                    lb = f"{ty}_{si}{jj}"
                    ops.append([f"s_cmp_eq_u32 s18, {jj}", f"s_cbranch_scc1 L_own{lb}",
                                f"buffer_store_dwordx4 {v4(o)}, {av}, {SRD_WS}, s{16+jj} offen offset:{si*1024} sc1", f"L_bk{lb}:"])
                    tail.extend([f"L_own{lb}:"] + [f"    ds_write_b128 v4, {v4(AC(2,mt,jj))} offset:{mt*1024}" for mt in segs[si]] + [f"    s_branch L_bk{lb}"])
            else:
                o = PKS[4]
                for jj in range(2):
                    a = AC(2, 4, jj)
                    for e in range(2): ops.append([f"v_perm_b32 v{o+2*jj+e}, v{a+2*e+1}, v{a+2*e}, s19"])
                for e in range(4): ops.append([f"v_bfi_b32 v{o+e}, s20, v{PM+e}, v{o+e}"])
                ops.append([f"buffer_store_dwordx4 {v4(o)}, v3, {SRD_WS}, s16 offen offset:2048 sc1"])
            return ops
        for mt in range(MT):
            WLG(f"r{g}_{mt}")
            for jj in range(2):
                mf(g, mt, jj); tfill(2)
        segend = {}
        acc_ = 0
        for si, sg in enumerate(segs):
            acc_ += NK*len(sg); segend[acc_ + 1] = si
        for k, (n, mt) in enumerate(seq):
            while any(x[1] == f"x{k}" for x in tr):
                assert tr[0][0] <= used[0]
                _, lab, tx = tr.pop(0); DS(lab, tx)
            WLG(f"x{k}")
            for jj in range(2):
                A(f"v_mfma_f32_16x16x32_bf16 {v4(AC(2,mt,jj))}, {v4(wt[n-n0]+4*jj)}, {v4(xr[k % len(xr)])}, {v4(AC(2,mt,jj))}")
                if jj == 1: used[0] = k
                if jj == 1 and k in segend: extra.extend(pub_ops(segend[k]))
                tfill(2)
        STAMP(7)
        if len(extra) < 7: A("s_nop 7")
        extra.extend(pub_ops(len(segs)-1))
        tfill(999)
        STAMP(8)
        A("s_waitcnt lgkmcnt(0)")
        A("s_barrier")
        A("s_branch L_fin")
    compute(1)
    LB("L_comp2")
    compute(2)

    LB("L_fin")
    if diag:
        STAMP(10)
        A("s_waitcnt vmcnt(0) lgkmcnt(0)")
        A("s_memrealtime s[16:17]")
        A("v_lshrrev_b32 v1, 6, v0")
        A("s_lshl_b32 s3, s2, 3")
        A("v_readfirstlane_b32 s4, v1")
        A(f"s_add_u32 s3, s3, s4")
        A("s_lshl_b32 s3, s3, 6")
        A("s_mov_b64 exec, 1")
        for i in range(1, 11):
            A(f"s_sub_u32 s4, s{70+2*i}, s70")
            A(f"v_mov_b32 v{T}, s4")
            A(f"buffer_store_dword v{T}, off, {SRD_WS}, s3 offset:{4*i}")
        A(f"v_mov_b32 v{T}, s69")
        A(f"buffer_store_dword v{T}, off, {SRD_WS}, s3 offset:60")
        A(f"v_mov_b32 v{T}, s70")
        A(f"buffer_store_dword v{T}, off, {SRD_WS}, s3 offset:52")
        A(f"v_mov_b32 v{T}, s101")
        A(f"buffer_store_dword v{T}, off, {SRD_WS}, s3 offset:56")
        A("s_waitcnt lgkmcnt(0)")
        A(f"v_mov_b32 v{T}, s16")
        A(f"buffer_store_dword v{T}, off, {SRD_WS}, s3 offset:0")
    LB("L_end")
    A("s_endpgm")
    L.extend(tail)
    body = "\n".join(L)
    hdr = open("standalone__dense_activation_squared_relu__sampling.s.ref").read().split("; Override")[0]
    txt = hdr + f"""; @launch grid=(256,1,1) block=(512,1,1) lds=163840
.amdgcn_target "amdgcn-amd-amdhsa--gfx950"
.text
.globl {NAME}
.p2align 8
.type {NAME},@function
{NAME}:
{body}
.section .rodata,"a"
.p2align 6
.amdhsa_kernel {NAME}
  .amdhsa_next_free_vgpr 256
  .amdhsa_next_free_sgpr 102
  .amdhsa_accum_offset 256
  .amdhsa_group_segment_fixed_size 0
  .amdhsa_kernarg_size 64
  .amdhsa_user_sgpr_count 2
  .amdhsa_user_sgpr_kernarg_segment_ptr 1
  .amdhsa_system_sgpr_workgroup_id_x 1
.end_amdhsa_kernel
"""
    return txt

if __name__ == "__main__":
    out = sys.argv[1]
    kw = {}
    for a in sys.argv[2:]:
        k, v = a.split("=", 1)
        kw[k] = eval(v)
    open(out, "w").write(build(**kw))
```
